```python
import torch

def _softmax(x, axis=-1):
    return torch.softmax(x, dim=axis)
def _gelu(x):
    return torch.nn.functional.gelu(x, approximate="tanh")
def _silu(x):
    return torch.nn.functional.silu(x)
def _sigmoid(x):
    return torch.sigmoid(x)
def _layernorm(x, axis=-1, eps=1e-5):
    m = x.mean(dim=axis, keepdim=True)
    v = x.var(dim=axis, keepdim=True, unbiased=False)
    return (x - m) / torch.sqrt(v + eps)
def _scatter_add(tgt, idx, src, axis=0):
    return tgt.clone().index_add_(axis, idx, src)
def _segment_sum(src, seg, n):
    out = torch.zeros((n,) + src.shape[1:], dtype=src.dtype)
    return out.index_add_(0, seg, src)
def _pad(x, pw):
    flat = tuple(v for pair in reversed(pw) for v in pair)
    return torch.nn.functional.pad(x, flat)

kernel_name = 'interleave_layers__linear_attn_block__glu_gated_geglu__prompt'

def setup_inputs():

    _w = (lambda a: (lambda t: t.to(torch.bfloat16) if t.is_floating_point() else t)(torch.as_tensor(a)))
    def _A_setup():
        B, S, D = 1, 2048, 512
        return {
            "x": _w((lambda *s: torch.randn(*s, dtype=torch.bfloat16) * 0.05)(B, S, D)),
            "wqkv": _w((lambda *s: torch.randn(*s, dtype=torch.bfloat16) * 0.05)(D, 3 * D)),
            "wo": _w((lambda *s: torch.randn(*s, dtype=torch.bfloat16) * 0.05)(D, D)),
        }
    _A_in = _A_setup()

    def _B_setup():
        B, S, Dm, Df = 1, 2048, 512, 1792
        return {
            "x": _w((lambda *s: torch.randn(*s, dtype=torch.bfloat16) * 0.05)(B, S, Dm)),
            "w_gate": _w((lambda *s: torch.randn(*s, dtype=torch.bfloat16) * 0.8)(Dm, Df) * (Dm ** -0.5)),
            "w_up": _w((lambda *s: torch.randn(*s, dtype=torch.bfloat16) * 0.8)(Dm, Df) * (Dm ** -0.5)),
            "w_down": _w((lambda *s: torch.randn(*s, dtype=torch.bfloat16) * 0.8)(Df, Dm) * (Df ** -0.5)),
        }
    _B_in = _B_setup()

    return {
        "A_x": _A_in["x"],
        "A_wqkv": _A_in["wqkv"],
        "A_wo": _A_in["wo"],
        "B_x": _B_in["x"],
        "B_w_gate": _B_in["w_gate"],
        "B_w_up": _B_in["w_up"],
        "B_w_down": _B_in["w_down"],
    }

def reference(A_x, A_wqkv, A_wo, B_x, B_w_gate, B_w_up, B_w_down):
    def _A_ref(x, wqkv, wo):
        B, S, D = x.shape
        H = 32; Dh = D // H
        qkv = (lambda x, *d: x.permute(*d))((x @ wqkv).reshape(B, S, 3, H, Dh), 2, 0, 3, 1, 4)
        q, k, v = qkv[0], qkv[1], qkv[2]
        phi = lambda t: torch.where(t > 0, t + 1, torch.exp(t)) + 1e-6
        pq, pk = phi(q), phi(k)
        kv = torch.einsum("bhsd,bhse->bhde", pk, v)
        z = torch.einsum("bhsd->bhd", pk)
        num = torch.einsum("bhqd,bhde->bhqe", pq, kv)
        den = torch.einsum("bhqd,bhd->bhq", pq, z)[..., None] + 1e-6
        o = num / den
        return (lambda x, *d: x.permute(*d))(o, 0, 2, 1, 3).reshape(B, S, D) @ wo

    def _B_ref(x, w_gate, w_up, w_down):
        g = torch.einsum("bsd,df->bsf", x, w_gate)
        u = torch.einsum("bsd,df->bsf", x, w_up)
        h = _gelu(g) * u
        return torch.einsum("bsf,fd->bsd", h, w_down)

    x = A_x
    x = x + _A_ref(_layernorm(x, axis=-1), A_wqkv, A_wo)
    x = x + _B_ref(_layernorm(x, axis=-1), B_w_gate, B_w_up, B_w_down)
    x = x + _A_ref(_layernorm(x, axis=-1), A_wqkv, A_wo)
    x = x + _B_ref(_layernorm(x, axis=-1), B_w_gate, B_w_up, B_w_down)
    return x
```

```python
import re

TRANS = ("v_exp_f32", "v_log_f32", "v_rcp_f32", "v_rsq_f32", "v_sqrt_f32", "v_sin_f32", "v_cos_f32")
_REG = re.compile(r"^(-?)(?:abs\()?([vas])(?:(\d+)|\[(\d+):(\d+)\])\)?$")


def regs_of(tok):
    tok = tok.strip()
    if tok == "vcc":
        return {("s", 106), ("s", 107)}
    if tok == "exec":
        return {("s", 126), ("s", 127)}
    if tok == "m0":
        return {("s", 124)}
    m = _REG.match(tok)
    if not m:
        return set()
    k = m.group(2)
    if m.group(3) is not None:
        return {(k, int(m.group(3)))}
    return {(k, i) for i in range(int(m.group(4)), int(m.group(5)) + 1)}


class Ins:
    __slots__ = ("text", "mn", "ops", "cls", "wr", "rd", "srcc", "srcab", "passes", "nstates", "wide", "is_dma", "dpp")

    def __init__(self, text):
        self.text = text
        t = text.split(";")[0].strip()
        parts = t.split(None, 1)
        self.mn = mn = parts[0]
        rest = parts[1] if len(parts) > 1 else ""
        toks = [x.strip() for x in rest.split(",")] if rest else []
        ops = []
        mods = []
        for i, x in enumerate(toks):
            sp = x.split()
            if sp:
                ops.append(sp[0])
                mods += sp[1:]
        self.ops = ops
        self.wr, self.rd = set(), set()
        self.srcc, self.srcab = set(), set()
        self.passes = 0
        self.nstates = 1
        self.wide = False
        self.is_dma = False
        self.dpp = any(m.startswith(("row_", "quad_perm", "wave_")) for m in mods) or mn.endswith("_dpp")
        R = regs_of
        if mn == "s_nop":
            self.cls = "nop"
            self.nstates = int(ops[0], 0) + 1
        elif mn.startswith("v_mfma"):
            self.cls = "mfma"
            self.wr = R(ops[0])
            self.srcab = R(ops[1]) | R(ops[2])
            self.srcc = R(ops[3])
            self.rd = self.srcab | self.srcc
            self.passes = 8 if "32x32" in mn else 4
        elif mn.startswith(("buffer_load", "global_load")):
            self.cls = "vload"
            if "lds" in mods or "_lds_" in mn:
                self.is_dma = True
                for o in ops:
                    self.rd |= R(o)
                self.rd |= {("s", 124)}
            else:
                self.wr = R(ops[0])
                for o in ops[1:]:
                    self.rd |= R(o)
        elif mn.startswith(("buffer_store", "global_store", "buffer_atomic", "global_atomic")):
            self.cls = "vstore"
            for o in ops:
                self.rd |= R(o)
            self.wide = mn.endswith(("x3", "x4"))
            if "atomic" in mn and "sc0" in mods:
                self.wr = R(ops[0])
        elif mn in ("buffer_inv", "buffer_wbl2"):
            self.cls = "other"
        elif mn.startswith("ds_"):
            self.cls = "ds"
            if mn.startswith(("ds_read", "ds_bpermute", "ds_permute", "ds_swizzle")) or "_rtn" in mn:
                self.wr = R(ops[0])
                for o in ops[1:]:
                    self.rd |= R(o)
            else:
                for o in ops:
                    self.rd |= R(o)
        elif mn.startswith("v_"):
            self.cls = "valu"
            if mn.startswith("v_permlane") and "swap" in mn:
                self.wr = R(ops[0]) | R(ops[1])
                self.rd = set(self.wr)
            elif mn.startswith("v_cmp"):
                self.wr = R(ops[0])
                for o in ops[1:]:
                    self.rd |= R(o)
            elif mn in ("v_nop",):
                pass
            else:
                self.wr = R(ops[0])
                srcs = ops[1:]
                if mn.startswith(("v_add_co", "v_sub_co", "v_addc_co", "v_subb_co")):
                    self.wr |= R(ops[1])
                    srcs = ops[2:]
                for o in srcs:
                    self.rd |= R(o)
                if mn.startswith(("v_fmac", "v_dot2c", "v_pk_fmac")):
                    self.rd |= R(ops[0])
        elif mn.startswith(("s_load", "s_buffer_load", "s_memtime", "s_memrealtime", "s_atomic")):
            self.cls = "smem"
            self.wr = R(ops[0])
            for o in ops[1:]:
                self.rd |= R(o)
        elif mn.startswith("s_"):
            self.cls = "salu"
            if mn.startswith(("s_cmp", "s_cbranch", "s_branch", "s_waitcnt", "s_barrier", "s_endpgm", "s_sleep", "s_setprio",
                              "s_bitcmp", "s_setpc")):
                for o in ops:
                    self.rd |= R(o)
            else:
                if ops:
                    self.wr = R(ops[0])
                for o in ops[1:]:
                    self.rd |= R(o)
                if "saveexec" in mn:
                    self.wr |= R("exec")
        else:
            raise ValueError("unknown instr: " + text)

    @property
    def is_trans(self):
        return self.mn.replace("_e32", "").replace("_e64", "") in TRANS

    @property
    def is_dot(self):
        return self.mn.startswith("v_dot")


def need_states(p, c):
    n = 0
    vw = {r for r in p.wr if r[0] in "va"}
    sw = {r for r in p.wr if r[0] == "s"}
    if p.cls == "valu":
        if c.cls == "mfma" and (vw & c.rd):
            n = max(n, 2)
        if c.cls == "valu":
            if p.is_trans and (vw & (c.rd | c.wr)):
                n = max(n, 1)
            if (c.mn.startswith(("v_readfirstlane", "v_readlane"))) and (vw & c.rd):
                n = max(n, 1)
            if c.mn.startswith("v_permlane") and (vw & c.rd):
                n = max(n, 2)
            if c.dpp and (vw & c.rd):
                n = max(n, 2)
            if sw & c.rd:
                n = max(n, 4 if c.mn.startswith(("v_readlane", "v_writelane")) else 2)
            if p.mn.startswith("v_cmp") and c.mn.startswith("v_cndmask") and "vcc" in p.ops[0]:
                n = max(n, 2)
        if p.is_dot and (vw & (c.rd | c.wr)):
            same = c.mn == p.mn
            if same and c.cls == "valu":
                ab = set()
                for o in c.ops[1:3]:
                    ab |= regs_of(o)
                if vw & ab:
                    n = max(n, 3)
            else:
                n = max(n, 3)
        if p.is_trans and c.cls in ("vstore", "vload", "ds") and (vw & c.rd):
            n = max(n, 1)
        if c.cls in ("vload", "vstore") and (sw & c.rd):
            n = max(n, 5)
        if c.cls in ("salu", "smem") and (sw & c.rd):
            n = max(n, 1)
        if (("s", 126) in sw) and c.cls == "mfma":
            n = max(n, 4)
    if p.cls == "mfma":
        big = 12 if p.passes == 8 else 8
        ovl = 10 if p.passes == 8 else 6
        war = 7 if p.passes == 8 else 3
        if c.cls == "mfma":
            if p.wr & c.srcab:
                n = max(n, big)
            if p.wr & c.srcc:
                if not (p.wr == c.srcc and p.passes == c.passes):
                    n = max(n, ovl)
            elif p.wr & c.wr:
                n = max(n, ovl)
        elif c.cls in ("valu", "vload", "vstore", "ds"):
            if p.wr & (c.rd | c.wr):
                n = max(n, big)
            if c.cls == "valu" and (p.srcc & c.wr):
                n = max(n, war)
            if c.cls in ("vload", "ds") and (p.srcc & c.wr):
                n = max(n, war)
    if p.cls == "vstore" and p.wide:
        data = regs_of(p.ops[0]) if p.mn.startswith("buffer") else regs_of(p.ops[1])
        if data & c.wr:
            n = max(n, 2)
    if p.cls == "salu" and ("s", 124) in p.wr and c.is_dma:
        n = max(n, 1)
    return n


class Kern:
    def __init__(self, name):
        self.name = name
        self.items = []
        self.vm_n = 0
        self.vm_done = 0
        self.lg_n = 0
        self.lg_done = 0
        self.maxv = 0
        self.maxa = -1
        self.maxs = 0

    def op(self, text):
        i = Ins(text)
        for k, r in i.wr | i.rd:
            if k == "v":
                self.maxv = max(self.maxv, r)
            elif k == "a":
                self.maxa = max(self.maxa, r)
            elif k == "s" and r < 102:
                self.maxs = max(self.maxs, r)
        self.items.append(i)
        if i.cls in ("vload", "vstore"):
            self.vm_n += 1
            return self.vm_n
        if i.cls == "ds":
            self.lg_n += 1
            return self.lg_n
        return None

    def __call__(self, text):
        out = None
        for line in text.strip().split("\n"):
            line = line.strip()
            if not line or line.startswith(";"):
                continue
            if line.endswith(":"):
                self.label(line[:-1])
            else:
                out = self.op(line)
        return out

    def label(self, name):
        self.items.append(name + ":")

    def comment(self, c):
        self.items.append("; " + c)

    def wait_vm(self, tok):
        if tok is None or tok <= self.vm_done:
            return
        n = min(self.vm_n - tok, 63)
        self.op("s_waitcnt vmcnt(%d)" % n)
        self.vm_done = self.vm_n - n

    def wait_lg(self, tok):
        if tok is None or tok <= self.lg_done:
            return
        n = min(self.lg_n - tok, 15)
        self.op("s_waitcnt lgkmcnt(%d)" % n)
        self.lg_done = self.lg_n - n

    def wait_all(self):
        self.op("s_waitcnt vmcnt(0) lgkmcnt(0)")
        self.vm_done = self.vm_n
        self.lg_done = self.lg_n

    def wait_lg0(self):
        self.op("s_waitcnt lgkmcnt(0)")
        self.lg_done = self.lg_n

    def wait_vm0(self):
        self.op("s_waitcnt vmcnt(0)")
        self.vm_done = self.vm_n

    def render(self):
        out = []
        hist = []
        npad = 0
        for it in self.items:
            if isinstance(it, str):
                out.append(it)
                continue
            need = 0
            dist = 0
            for p in reversed(hist):
                r = need_states(p, it)
                if r > dist:
                    need = max(need, r - dist)
                dist += p.nstates
                if dist >= 20:
                    break
            while need > 0:
                k = min(need, 16)
                nop = Ins("s_nop %d" % (k - 1))
                out.append("    " + nop.text)
                hist.append(nop)
                need -= k
                npad += 1
            out.append("    " + it.text)
            hist.append(it)
            if len(hist) > 40:
                hist = hist[-30:]
        self.npad = npad
        return "\n".join(out)

    def full_text(self, extra_desc=""):
        body = self.render()
        nv = self.maxv + 1
        acc = (nv + 3) // 4 * 4
        nfv = acc + (self.maxa + 1) if self.maxa >= 0 else nv
        txt = f""".globl {self.name}
.p2align 8
.type {self.name},@function
{self.name}:
{body}
"""
        desc = f""".p2align 6
.amdhsa_kernel {self.name}
  .amdhsa_next_free_vgpr {nfv}
  .amdhsa_next_free_sgpr {max(self.maxs + 1, 16)}
  .amdhsa_accum_offset {acc}
  .amdhsa_group_segment_fixed_size 0
  .amdhsa_kernarg_size 80
  .amdhsa_user_sgpr_count 2
  .amdhsa_user_sgpr_kernarg_segment_ptr 1
  .amdhsa_system_sgpr_workgroup_id_x 1
{extra_desc}.end_amdhsa_kernel
"""
        return txt, desc
```

```python
import sys, struct, math
sys.path.insert(0, "dev")
from asmlib import Kern

NAME = "interleave_layers__linear_attn_block__glu_gated_geglu__prompt"

P_QKV = 0x000000
P_WO = 0x180000
P_GU = 0x200000
P_WD = 0x580000
CS_QKV = 0x740000
CS_GU = 0x750000
KV = 0x770000
CS_DUMMY = 0x77C000
ST_A = 0x780000
ST_1 = 0x7C0000
XA = 0x800000
X1 = 0xA00000
PQ = 0xC00000
HB = 0xE00000
WS_USED = 0x1500000

ONES = 0x3F803F80
LOG2E = 1.4426950408889634


def f2u(x):
    return struct.unpack("<I", struct.pack("<f", x))[0]


def fx(x):
    return "0x%08x" % f2u(x)


SRD_WS = "s[36:39]"


def prologue(k, nwg, done):
    k(f"""
    s_cmp_ge_u32 s2, {nwg}
    s_cbranch_scc1 {done}
    s_load_dwordx16 s[16:31], s[0:1], 0
    s_load_dwordx4 s[32:35], s[0:1], 64
    """)


def build_ws_srd(k):
    k(f"""
    s_waitcnt lgkmcnt(0)
    s_mov_b32 s36, s34
    s_mov_b32 s37, s35
    s_mov_b32 s38, {WS_USED}
    s_mov_b32 s39, 0x20000
    """)


def srd(k, d, base, nbytes):
    k(f"""
    s_mov_b32 s{d}, s{base}
    s_mov_b32 s{d+1}, s{base+1}
    s_mov_b32 s{d+2}, {nbytes}
    s_mov_b32 s{d+3}, 0x20000
    """)


def xhalf_add(k, v, ta, tb):
    k(f"v_mov_b32 v{ta}, v{v}")
    k(f"v_mov_b32 v{tb}, v{v}")
    k(f"v_permlane32_swap_b32 v{ta}, v{tb}")
    k(f"v_add_f32 v{v}, v{ta}, v{tb}")


def gen_k0():
    k = Kern("k0_kernel")
    NJ = 592
    prologue(k, NJ, "k0_done")
    build_ws_srd(k)
    k("""
    s_cmp_ge_u32 s2, 464
    s_cbranch_scc1 k0_x
    s_cmp_ge_u32 s2, 352
    s_cbranch_scc1 k0_wd
    s_cmp_ge_u32 s2, 320
    s_cbranch_scc1 k0_wo
    s_cmp_ge_u32 s2, 224
    s_cbranch_scc1 k0_qkv
    """)
    srd(k, 40, 24, 512 * 1792 * 2)
    srd(k, 44, 26, 512 * 1792 * 2)
    k(f"""
    s_lshr_b32 s70, s2, 3
    s_and_b32 s71, s2, 7
    s_mov_b32 s60, 3584
    s_mul_i32 s61, s71, {64*3584}
    s_lshl_b32 s72, s70, 7
    s_add_u32 s61, s61, s72
    s_mov_b32 s62, s61
    s_mov_b32 s63, 8192
    s_mov_b32 s64, 0
    s_mov_b32 s65, 32
    s_mov_b32 s66, 64
    s_mov_b32 s67, 96
    """)
    for q in range(4):
        k(f"""
        s_lshl_b32 s72, s70, 2
        s_add_u32 s72, s72, {q}
        s_mul_i32 s73, s72, 9363
        s_lshr_b32 s73, s73, 16
        s_mul_i32 s74, s73, 7
        s_sub_u32 s74, s72, s74
        s_lshl_b32 s75, s71, 4
        s_add_u32 s75, s75, s74
        s_lshl_b32 s76, s74, 5
        s_lshl_b32 s77, s71, 2
        s_add_u32 s76, s76, s77
        s_cmp_lt_u32 s74, 4
        s_cselect_b32 s75, s75, s76
        s_cselect_b32 s{52+q}, 4, 1
        s_lshl_b32 s{52+q}, s{52+q}, 10
        s_lshl_b32 s75, s75, 10
        s_mul_i32 s73, s73, {224*1024}
        s_add_u32 s75, s75, s73
        s_add_u32 s{48+q}, s75, {P_GU}
        s_mul_i32 s75, s71, {3584*4}
        s_lshl_b32 s72, s72, 7
        s_add_u32 s75, s75, s72
        s_add_u32 s{56+q}, s75, {CS_GU}
        """)
    k("s_branch k0_pack")
    k.label("k0_qkv")
    srd(k, 40, 18, 512 * 1536 * 2)
    srd(k, 44, 18, 512 * 1536 * 2)
    k(f"""
    s_sub_u32 s69, s2, 224
    s_lshr_b32 s70, s69, 3
    s_and_b32 s71, s69, 7
    s_mov_b32 s60, 3072
    s_mul_i32 s61, s71, {64*3072}
    s_lshl_b32 s72, s70, 8
    s_add_u32 s61, s61, s72
    s_add_u32 s62, s61, 128
    s_lshr_b32 s73, s70, 2
    s_and_b32 s74, s70, 3
    s_lshl_b32 s75, s71, 2
    s_add_u32 s75, s75, 64
    s_lshl_b32 s76, s71, 3
    s_add_u32 s76, s76, s73
    s_sub_u32 s76, s76, 1
    s_sub_u32 s78, s73, 1
    s_lshl_b32 s78, s78, 7
    s_cmp_eq_u32 s73, 0
    s_cselect_b32 s75, s75, s76
    s_cselect_b32 s77, 1, 2
    s_cselect_b32 s78, 256, s78
    s_lshl_b32 s77, s77, 10
    s_lshl_b32 s75, s75, 10
    s_mul_i32 s79, s71, 6144
    s_add_u32 s78, s78, s79
    """)
    for q in range(4):
        k(f"""
        s_lshl_b32 s72, s74, 2
        s_add_u32 s72, s72, {q}
        s_mul_i32 s76, s72, {96*1024}
        s_add_u32 s76, s76, s75
        s_add_u32 s{48+q}, s76, {P_QKV}
        s_mov_b32 s{52+q}, s77
        s_mul_i32 s76, s72, 384
        s_add_u32 s76, s76, s78
        s_add_u32 s{56+q}, s76, {CS_QKV}
        """)
    k("s_branch k0_plain")
    k.label("k0_wo")
    srd(k, 40, 20, 512 * 512 * 2)
    srd(k, 44, 20, 512 * 512 * 2)
    k(f"""
    s_sub_u32 s69, s2, 320
    s_lshr_b32 s70, s69, 3
    s_and_b32 s71, s69, 7
    s_mov_b32 s60, 1024
    s_lshl_b32 s61, s71, 16
    s_lshl_b32 s72, s70, 8
    s_add_u32 s61, s61, s72
    s_add_u32 s62, s61, 128
    s_lshl_b32 s75, s70, 17
    s_lshl_b32 s76, s71, 14
    s_add_u32 s75, s75, s76
    """)
    for q in range(4):
        k(f"""
        s_add_u32 s{48+q}, s75, {P_WO + q*1024}
        s_mov_b32 s{52+q}, 4096
        s_mov_b32 s{56+q}, {CS_DUMMY}
        """)
    k("s_branch k0_plain")
    k.label("k0_wd")
    srd(k, 40, 28, 1792 * 512 * 2)
    srd(k, 44, 28, 1792 * 512 * 2)
    k(f"""
    s_sub_u32 s69, s2, 352
    s_and_b32 s70, s69, 3
    s_lshr_b32 s71, s69, 2
    s_mov_b32 s60, 1024
    s_lshl_b32 s61, s71, 16
    s_lshl_b32 s72, s70, 8
    s_add_u32 s61, s61, s72
    s_add_u32 s62, s61, 128
    s_mul_i32 s75, s70, {2*224*1024}
    s_lshl_b32 s76, s71, 13
    s_add_u32 s75, s75, s76
    """)
    for q in range(4):
        k(f"""
        s_add_u32 s{48+q}, s75, {P_WD + (q>>1)*224*1024 + (q&1)*1024}
        s_mov_b32 s{52+q}, 2048
        s_mov_b32 s{56+q}, {CS_DUMMY}
        """)
    k.label("k0_plain")
    k("""
    s_mov_b32 s63, 32
    s_mov_b32 s64, 0
    s_mov_b32 s65, 64
    s_mov_b32 s66, 8192
    s_mov_b32 s67, 8256
    """)
    k.label("k0_pack")
    k(f"""
    v_lshrrev_b32 v1, 3, v0
    v_mul_lo_u32 v1, v1, s60
    v_and_b32 v8, 7, v0
    v_lshl_add_u32 v1, v8, 4, v1
    s_lshl_b32 s68, s60, 3
    """)
    for part in range(2):
        so = 61 + part
        sr = "s[40:43]" if part == 0 else "s[44:47]"
        for g in range(8):
            k(f"s_mov_b32 m0, {part*8192 + g*1024}")
            k(f"buffer_load_dwordx4 v1, {sr}, s{so} offen lds")
            if g < 7:
                k(f"s_add_u32 s{so}, s{so}, s68")
    k(f"""
    v_bfe_u32 v8, v0, 4, 1
    v_mul_lo_u32 v8, v8, s63
    v_lshrrev_b32 v9, 5, v0
    v_lshlrev_b32 v9, 2, v9
    v_bfe_u32 v10, v0, 2, 2
    v_add_u32 v9, v9, v10
    v_lshl_add_u32 v8, v9, 7, v8
    v_and_b32 v10, 3, v0
    v_lshl_add_u32 v8, v10, 3, v8
    v_add_u32 v2, s64, v8
    v_add_u32 v3, s65, v8
    v_add_u32 v4, s66, v8
    v_add_u32 v5, s67, v8
    v_lshlrev_b32 v6, 4, v0
    v_and_b32 v7, 31, v0
    v_lshlrev_b32 v7, 2, v7
    v_mov_b32 v11, {hex(ONES)}
    v_mov_b32 v12, 0
    v_mov_b32 v13, 0
    v_mov_b32 v14, 0
    v_mov_b32 v15, 0
    """)
    k.wait_vm0()
    toks = {}
    for q in range(4):
        for u in range(4):
            r = 16 + (q * 4 + u) * 4
            k(f"ds_read_b64_tr_b16 v[{r}:{r+1}], v{2+q} offset:{(16*u)*128}")
            toks[(q, u)] = k(f"ds_read_b64_tr_b16 v[{r+2}:{r+3}], v{2+q} offset:{(16*u+8)*128}")
        for u in range(4):
            r = 16 + (q * 4 + u) * 4
            k.wait_lg(toks[(q, u)])
            k(f"buffer_store_dwordx4 v[{r}:{r+3}], v6, {SRD_WS}, s{48+q} offen")
            if u < 3:
                k(f"s_add_u32 s{48+q}, s{48+q}, s{52+q}")
            for d in range(4):
                k(f"v_dot2_f32_bf16 v{12+q}, v{r+d}, v11, v{12+q}")
    for q in range(4):
        xhalf_add(k, 12 + q, 8, 9)
        k(f"buffer_store_dword v{12+q}, v7, {SRD_WS}, s{56+q} offen")
    k("s_endpgm")
    k.label("k0_x")
    srd(k, 40, 16, 2048 * 512 * 2)
    k(f"""
    s_sub_u32 s69, s2, 464
    s_lshr_b32 s70, s69, 1
    s_and_b32 s71, s69, 1
    s_lshl_b32 s61, s70, 15
    s_lshl_b32 s72, s71, 9
    s_add_u32 s61, s61, s72
    v_and_b32 v1, 31, v0
    v_lshlrev_b32 v7, 3, v1
    v_lshlrev_b32 v1, 10, v1
    v_lshrrev_b32 v8, 5, v0
    v_lshl_add_u32 v1, v8, 4, v1
    v_lshlrev_b32 v6, 4, v0
    v_mov_b32 v11, {hex(ONES)}
    """)
    lt = []
    for c in range(16):
        r = 16 + c * 4
        lt.append(k(f"buffer_load_dwordx4 v[{r}:{r+3}], v1, s[40:43], s61 offen offset:{c*32}"))
    k(f"""
    s_mul_i32 s73, s69, 272
    s_add_u32 s73, s73, {KV}
    v_mov_b32 v80, 0
    v_mov_b32 v81, 0
    v_mov_b32 v82, 0
    v_mov_b32 v83, 0
    s_mov_b64 exec, 0x1ffff
    buffer_store_dwordx4 v[80:83], v6, {SRD_WS}, s73 offen
    s_mov_b64 exec, -1
    s_lshl_b32 s62, s70, 15
    s_lshl_b32 s72, s71, 14
    s_add_u32 s62, s62, s72
    s_add_u32 s62, s62, {XA}
    s_lshl_b32 s63, s71, 17
    s_lshl_b32 s72, s70, 8
    s_add_u32 s63, s63, s72
    s_add_u32 s63, s63, {ST_A}
    """)
    for p in range(8):
        k("v_mov_b32 v12, 0")
        k("v_mov_b32 v13, 0")
        for c in (2 * p, 2 * p + 1):
            r = 16 + c * 4
            k.wait_vm(lt[c])
            k(f"v_permlane32_swap_b32 v{r}, v{r+2}")
            k(f"v_permlane32_swap_b32 v{r+1}, v{r+3}")
            k(f"buffer_store_dwordx4 v[{r}:{r+3}], v6, {SRD_WS}, s62 offen offset:{(c%4)*1024}")
            if c % 4 == 3:
                k("s_add_u32 s62, s62, 4096")
            for d in range(4):
                k(f"v_dot2_f32_bf16 v12, v{r+d}, v11, v12")
                k(f"v_dot2_f32_bf16 v13, v{r+d}, v{r+d}, v13")
        xhalf_add(k, 12, 8, 9)
        xhalf_add(k, 13, 8, 9)
        k(f"buffer_store_dwordx2 v[12:13], v7, {SRD_WS}, s63 offen")
        k("s_add_u32 s63, s63, 16384")
        k("s_nop 1")
    k.label("k0_done")
    k("s_endpgm")
    return k, (NJ, 64, 16384)


def lane_setup(k):
    k("""
    v_lshrrev_b32 v3, 6, v0
    v_and_b32 v0, 63, v0
    v_readfirstlane_b32 s3, v3
    v_lshlrev_b32 v1, 4, v0
    v_and_b32 v2, 31, v0
    v_lshrrev_b32 v3, 5, v0
    """)


def load_stats(k, st_base, s_tb, vdst, vaddr, stmp):
    k(f"""
    v_lshlrev_b32 v{vaddr}, 17, v3
    v_lshl_add_u32 v{vaddr}, v2, 3, v{vaddr}
    s_lshl_b32 s{stmp}, s{s_tb}, 8
    s_add_u32 s{stmp}, s{stmp}, {st_base}
    """)
    tok = None
    for p in range(8):
        tok = k(f"buffer_load_dwordx2 v[{vdst+2*p}:{vdst+2*p+1}], v{vaddr}, {SRD_WS}, s{stmp} offen")
        if p < 7:
            k(f"s_add_u32 s{stmp}, s{stmp}, 16384")
    return tok


def reduce_stats(k, vsrc, vmean, vrstd, ta, tb):
    for st in (4, 2, 1):
        for p in range(st):
            k(f"v_add_f32 v{vsrc+2*p}, v{vsrc+2*p}, v{vsrc+2*(p+st)}")
            k(f"v_add_f32 v{vsrc+2*p+1}, v{vsrc+2*p+1}, v{vsrc+2*(p+st)+1}")
    xhalf_add(k, vsrc, ta, tb)
    xhalf_add(k, vsrc + 1, ta, tb)
    k(f"""
    v_mul_f32 v{vmean}, {fx(1.0/512)}, v{vsrc}
    v_mul_f32 v{vsrc+1}, {fx(1.0/512)}, v{vsrc+1}
    v_fma_f32 v{vsrc+1}, -v{vmean}, v{vmean}, v{vsrc+1}
    v_max_f32 v{vsrc+1}, 0, v{vsrc+1}
    v_add_f32 v{vsrc+1}, {fx(1e-5)}, v{vsrc+1}
    v_rsq_f32 v{vrstd}, v{vsrc+1}
    """)


class Filler:
    def __init__(self):
        self.q = []

    def add(self, fn, cost=4):
        self.q.append((fn, cost))

    def run(self, budget):
        while self.q and budget > 0:
            fn, c = self.q.pop(0)
            fn()
            budget -= c

    def flush(self):
        self.run(1 << 30)


def out_tile_epilogue(k, acc, res, vt, s_out, st_soff, final, vaddr_out=None, srd_out=None):
    for d in range(8):
        k(f"v_lshlrev_b32 v{vt}, 16, v{res+d}")
        k(f"v_and_b32 v{vt+1}, 0xffff0000, v{res+d}")
        k(f"v_add_f32 v{acc+2*d}, v{acc+2*d}, v{vt}")
        k(f"v_add_f32 v{acc+2*d+1}, v{acc+2*d+1}, v{vt+1}")
        k(f"v_cvt_pk_bf16_f32 v{res+d}, v{acc+2*d}, v{acc+2*d+1}")
    if not final:
        k(f"buffer_store_dwordx4 v[{res}:{res+3}], v1, {SRD_WS}, s{s_out} offen")
        k(f"buffer_store_dwordx4 v[{res+4}:{res+7}], v1, {SRD_WS}, s{s_out} offen offset:1024")
        k(f"v_mov_b32 v{vt}, 0")
        k(f"v_mov_b32 v{vt+1}, 0")
        k(f"v_mov_b32 v{vt+2}, {hex(ONES)}")
        for d in range(8):
            k(f"v_dot2_f32_bf16 v{vt}, v{res+d}, v{vt+2}, v{vt}")
            k(f"v_dot2_f32_bf16 v{vt+1}, v{res+d}, v{res+d}, v{vt+1}")
        xhalf_add(k, vt, vt + 2, vt + 3)
        xhalf_add(k, vt + 1, vt + 2, vt + 3)
        k(f"v_lshlrev_b32 v{vt+2}, 3, v2")
        k(f"buffer_store_dwordx2 v[{vt}:{vt+1}], v{vt+2}, {SRD_WS}, s{st_soff} offen")
    else:
        for b in range(2):
            r = res + 4 * b
            k(f"v_permlane32_swap_b32 v{r}, v{r+2}")
            k(f"v_permlane32_swap_b32 v{r+1}, v{r+3}")
            k(f"buffer_store_dwordx4 v[{r}:{r+3}], v{vaddr_out}, {srd_out}, s{s_out} offen offset:{b*32}")


def xwave_reduce(k, accs, vaddr, vt):
    k(f"s_lshl_b32 s4, s3, 12")
    k(f"v_add_u32 v{vaddr}, s4, v1")
    for c in range(4):
        for q in range(4):
            k(f"ds_write_b128 v{vaddr}, v[{accs[c]+4*q}:{accs[c]+4*q+3}] offset:{c*16384+q*1024}")
    k.wait_lg0()
    k("s_barrier")
    k(f"s_lshl_b32 s4, s3, 14")
    k(f"v_add_u32 v{vaddr}, s4, v1")
    toks = {}
    for w in range(4):
        for q in range(4):
            toks[(w, q)] = k(f"ds_read_b128 v[{accs[w]+4*q}:{accs[w]+4*q+3}], v{vaddr} offset:{w*4096+q*1024}")
    for q in range(4):
        k.wait_lg(toks[(1, q)])
        for i in range(4):
            k(f"v_add_f32 v{accs[0]+4*q+i}, v{accs[0]+4*q+i}, v{accs[1]+4*q+i}")
    for q in range(4):
        k.wait_lg(toks[(3, q)])
        for i in range(4):
            k(f"v_add_f32 v{accs[2]+4*q+i}, v{accs[2]+4*q+i}, v{accs[3]+4*q+i}")
    for r in range(16):
        k(f"v_add_f32 v{accs[0]+r}, v{accs[0]+r}, v{accs[2]+r}")
    return accs[0]


def xstat_loop(k, N, stage_sync, mfma_emit, fill, ring_frags, vl, D=3, NW=8, wbase=128, budget=16):
    tok = {}
    for idx in range(N + D):
        if idx < N:
            if idx % 16 == 0:
                stage_sync(idx // 16)
            off = (idx % ring_frags) * 1024
            wr = wbase + (idx % NW) * 4
            tok[idx] = k(f"ds_read_b128 a[{wr}:{wr+3}], v{vl[off >> 16]} offset:{off & 0xffff}")
        j = idx - D
        if j >= 0:
            k.wait_lg(tok[j])
            wr = wbase + (j % NW) * 4
            mfma_emit(j, f"a[{wr}:{wr+3}]")
            fill(j)


def gen_k1():
    k = Kern("k1_kernel")
    prologue(k, 256, "k1_done")
    lane_setup(k)
    k("""
    s_and_b32 s4, s2, 7
    s_lshr_b32 s5, s2, 3
    s_lshr_b32 s6, s4, 1
    s_lshl_b32 s6, s6, 2
    s_and_b32 s7, s5, 3
    s_add_u32 s6, s6, s7
    s_and_b32 s7, s4, 1
    s_lshl_b32 s7, s7, 3
    s_lshr_b32 s5, s5, 2
    s_add_u32 s7, s7, s5
    s_lshl_b32 s8, s6, 2
    s_add_u32 s8, s8, s3
    """)
    build_ws_srd(k)
    AK, AV, AQ = 64, 80, 96
    VST = 16
    VCS = 32
    tst = load_stats(k, ST_A, 8, VST, 4, 9)
    k(f"""
    s_mul_i32 s9, s7, 384
    s_add_u32 s9, s9, {CS_QKV}
    v_lshlrev_b32 v4, 2, v0
    v_lshlrev_b32 v5, 2, v2
    """)
    for p in range(8):
        k(f"buffer_load_dword v{VCS+p}, v4, {SRD_WS}, s9 offen")
        tcs = k(f"buffer_load_dword v{VCS+8+p}, v5, {SRD_WS}, s9 offen offset:256")
        if p < 7:
            k("s_add_u32 s9, s9, 6144")
    k(f"""
    s_lshl_b32 s10, s8, 15
    s_add_u32 s10, s10, {XA}
    s_mul_i32 s11, s7, {96*1024}
    s_lshl_b32 s12, s3, 12
    s_add_u32 s11, s11, s12
    s_add_u32 s11, s11, {P_QKV}
    """)

    stage_tok = {}

    def issue_x(s0, n):
        for s in range(s0, s0 + n):
            k(f"buffer_load_dwordx4 a[{4*s}:{4*s+3}], v1, {SRD_WS}, s10 offen offset:{(s%4)*1024}")
            if s % 4 == 3:
                k("s_add_u32 s10, s10, 4096")

    def issue_w(st):
        k("s_mov_b32 m0, s12")
        for i in range(4):
            stage_tok[st] = k(f"buffer_load_dwordx4 v1, {SRD_WS}, s11 offen offset:{i*1024} lds")
        k("s_add_u32 s11, s11, 16384")
        k("s_add_u32 s12, s12, 16384")

    for st in range(3):
        issue_x(8 * st, 8)
        issue_w(st)
    LM = 96 * 1024
    k.wait_vm(tst)
    VMEAN, VRSTD = 6, 7
    reduce_stats(k, VST, VMEAN, VRSTD, 8, 9)
    k(f"""
    s_lshl_b32 s13, s3, 9
    s_add_u32 s13, s13, {LM}
    v_lshl_add_u32 v8, v2, 2, s13
    v_lshl_add_u32 v9, v3, 4, s13
    ds_write_b32 v8, v{VMEAN}
    ds_write_b32 v8, v{VRSTD} offset:128
    """)
    k.wait_vm(tcs)
    for st in (4, 2, 1):
        for p in range(st):
            k(f"v_add_f32 v{VCS+p}, v{VCS+p}, v{VCS+p+st}")
            k(f"v_add_f32 v{VCS+8+p}, v{VCS+8+p}, v{VCS+8+p+st}")
    k(f"ds_write_b32 v8, v{VCS+8} offset:256")
    CSK, CSV = 10, 11
    k(f"""
    v_mov_b32 v{CSK}, v{VCS}
    v_mov_b32 v{CSV}, v{VCS}
    v_permlane32_swap_b32 v{CSK}, v{CSV}
    """)
    RM, RR, RC = 16, 32, 48
    k.wait_lg0()
    for q in range(4):
        k(f"ds_read_b128 v[{RM+4*q}:{RM+4*q+3}], v9 offset:{q*32}")
    for q in range(4):
        k(f"ds_read_b128 v[{RR+4*q}:{RR+4*q+3}], v9 offset:{128+q*32}")
    for q in range(4):
        k(f"ds_read_b128 v[{RC+4*q}:{RC+4*q+3}], v9 offset:{256+q*32}")
    issue_x(24, 8)
    issue_w(3)
    k.wait_lg0()
    for r in range(16):
        k(f"v_mul_f32 v{AK+r}, -v{RM+r}, v{CSK}")
        k(f"v_mul_f32 v{AV+r}, -v{RM+r}, v{CSV}")
    for r in range(16):
        k(f"v_mul_f32 v{AQ+r}, -v{VMEAN}, v{RC+r}")
    k("v_add_u32 v5, 0x10000, v1")

    fl = Filler()
    PKF, VF = 112, 120
    T0 = 128
    ZP = 12
    KVA = 96 + 48

    def kv_epilogue():
        for r in range(16):
            ta, tb_ = T0 + 2 * (r % 2), T0 + 2 * (r % 2) + 1
            fl.add(lambda r=r, ta=ta: k(f"v_mul_f32 v{AK+r}, v{AK+r}, v{RR+r}"))
            fl.add(lambda r=r, ta=ta: k(f"v_mul_f32 v{ta}, {fx(LOG2E)}, v{AK+r}"))
            fl.add(lambda r=r, ta=ta: k(f"v_min_f32 v{ta}, 0, v{ta}"))
            fl.add(lambda r=r, ta=ta: k(f"v_exp_f32 v{ta}, v{ta}"), 8)
            fl.add(lambda r=r, ta=ta: k(f"v_max_f32 v{AK+r}, 0, v{AK+r}"))
            fl.add(lambda r=r, ta=ta: k(f"v_add_f32 v{AK+r}, {fx(1e-6)}, v{AK+r}"))
            fl.add(lambda r=r, ta=ta: k(f"v_add_f32 v{AK+r}, v{AK+r}, v{ta}"))
            fl.add(lambda r=r: k(f"v_mul_f32 v{AV+r}, v{AV+r}, v{RR+r}"))
            if r % 2 == 1:
                fl.add(lambda r=r: k(f"v_cvt_pk_bf16_f32 v{PKF+r//2}, v{AK+r-1}, v{AK+r}"))
                fl.add(lambda r=r: k(f"v_cvt_pk_bf16_f32 v{VF+r//2}, v{AV+r-1}, v{AV+r}"))
        fl.add(lambda: k(f"v_mov_b32 v{ZP}, 0"))
        fl.add(lambda: k(f"v_mov_b32 v{T0}, {hex(ONES)}"))
        for d in range(8):
            fl.add(lambda d=d: k(f"v_dot2_f32_bf16 v{ZP}, v{PKF+d}, v{T0}, v{ZP}"))

    def stage_sync(st):
        k.wait_vm(stage_tok[st])
        k("s_barrier")
        if st + 4 <= 5:
            issue_w(st + 4)

    def mfma_emit(j, w):
        if j < 64:
            s, t = j // 2, j % 2
            acc = AK if t == 0 else AV
            k(f"v_mfma_f32_32x32x16_bf16 v[{acc}:{acc+15}], a[{4*s}:{4*s+3}], {w}, v[{acc}:{acc+15}]")
        else:
            s = j - 64
            k(f"v_mfma_f32_32x32x16_bf16 v[{AQ}:{AQ+15}], {w}, a[{4*s}:{4*s+3}], v[{AQ}:{AQ+15}]")

    def fill(j):
        if j == 65:
            kv_epilogue()
        fl.run(20)

    xstat_loop(k, 96, stage_sync, mfma_emit, fill, 96, [1, 5])
    fl.flush()
    k(f"v_mfma_f32_32x32x16_bf16 v[{KVA}:{KVA+15}], v[{PKF}:{PKF+3}], v[{VF}:{VF+3}], 0")
    k(f"v_mfma_f32_32x32x16_bf16 v[{KVA}:{KVA+15}], v[{PKF+4}:{PKF+7}], v[{VF+4}:{VF+7}], v[{KVA}:{KVA+15}]")
    xhalf_add(k, ZP, T0, T0 + 1)
    k(f"v_mul_f32 v13, {fx(LOG2E)}, v{VRSTD}")
    for r in range(16):
        ta = T0 + (r % 4)
        k(f"v_mul_f32 v{ta}, v{AQ+r}, v13")
        k(f"v_mul_f32 v{AQ+r}, v{AQ+r}, v{VRSTD}")
        k(f"v_min_f32 v{ta}, 0, v{ta}")
        k(f"v_exp_f32 v{ta}, v{ta}")
        k(f"v_max_f32 v{AQ+r}, 0, v{AQ+r}")
        k(f"v_add_f32 v{AQ+r}, {fx(1e-6)}, v{AQ+r}")
        k(f"v_add_f32 v{AQ+r}, v{AQ+r}, v{ta}")
        if r % 2 == 1:
            k(f"v_cvt_pk_bf16_f32 v{PKF+r//2}, v{AQ+r-1}, v{AQ+r}")
        if r == 3:
            LR = LM + 2048
            k(f"""
            s_mul_i32 s13, s3, 2176
            s_add_u32 s13, s13, {LR}
            v_and_b32 v8, 15, v0
            v_lshlrev_b32 v8, 6, v8
            v_lshl_add_u32 v8, v3, 5, v8
            v_add_u32 v8, s13, v8
            s_mov_b32 exec_lo, 0x0000ffff
            s_mov_b32 exec_hi, 0x0000ffff
            ds_write_b128 v8, v[{KVA}:{KVA+3}]
            ds_write_b128 v8, v[{KVA+4}:{KVA+7}] offset:16
            s_mov_b32 exec_lo, 0xffff0000
            s_mov_b32 exec_hi, 0xffff0000
            ds_write_b128 v8, v[{KVA+8}:{KVA+11}] offset:1088
            ds_write_b128 v8, v[{KVA+12}:{KVA+15}] offset:1104
            s_mov_b64 exec, -1
            v_bfe_u32 v8, v0, 4, 1
            v_mul_u32_u24 v8, 1088, v8
            v_bfe_u32 v9, v0, 2, 1
            v_lshl_add_u32 v8, v9, 5, v8
            v_and_b32 v9, 3, v0
            v_lshl_add_u32 v8, v9, 2, v8
            v_bfe_u32 v9, v0, 3, 1
            v_lshl_add_u32 v8, v9, 4, v8
            v_add_u32 v8, s13, v8
            ds_write_b32 v8, v{ZP} offset:1024
            """)
    k(f"""
    s_lshl_b32 s13, s8, 15
    s_lshl_b32 s14, s7, 11
    s_add_u32 s13, s13, s14
    s_add_u32 s13, s13, {PQ}
    buffer_store_dwordx4 v[{PKF}:{PKF+3}], v1, {SRD_WS}, s13 offen
    buffer_store_dwordx4 v[{PKF+4}:{PKF+7}], v1, {SRD_WS}, s13 offen offset:1024
    """)
    k.wait_lg0()
    k("s_barrier")
    LR = LM + 2048
    k(f"""
    s_lshl_b32 s13, s3, 8
    v_lshl_add_u32 v8, v0, 2, s13
    v_add_u32 v9, {LR}, v8
    s_mul_i32 s14, s7, 2176
    s_add_u32 s14, s14, {KV}
    """)
    for i in range(3):
        for w in range(4):
            k(f"ds_read_b32 v{16+4*i+w}, v9 offset:{w*2176+i*1024}")
    k.wait_lg0()
    for i in range(3):
        k(f"v_add_f32 v{16+4*i}, v{16+4*i}, v{17+4*i}")
        k(f"v_add_f32 v{18+4*i}, v{18+4*i}, v{19+4*i}")
        k(f"v_add_f32 v{16+4*i}, v{16+4*i}, v{18+4*i}")
    k(f"buffer_atomic_add_f32 v16, v8, {SRD_WS}, s14 offen")
    k(f"buffer_atomic_add_f32 v20, v8, {SRD_WS}, s14 offen offset:1024")
    k(f"""
    s_cmp_lg_u32 s3, 0
    s_cbranch_scc1 k1_done
    s_mov_b32 exec_hi, 0
    buffer_atomic_add_f32 v24, v8, {SRD_WS}, s14 offen offset:2048
    """)
    k.label("k1_done")
    k("s_endpgm")
    return k, (256, 256, 96 * 1024 + 2048 + 4 * 2176 + 2048)


def gen_k2():
    k = Kern("k2_kernel")
    prologue(k, 256, "k2_done")
    lane_setup(k)
    k("""
    s_and_b32 s4, s2, 7
    s_lshr_b32 s5, s2, 3
    s_lshl_b32 s6, s4, 3
    s_lshr_b32 s7, s5, 2
    s_add_u32 s6, s6, s7
    s_and_b32 s7, s5, 3
    """)
    build_ws_srd(k)
    KVR = 16
    PQR = 128
    ACC = [80, 96, 112, 128]
    D = [144, 160]
    RES = 176
    OF = [184, 188]
    AF = [192, 196]
    k(f"""
    v_min_u32 v4, 16, v2
    v_lshlrev_b32 v4, 6, v4
    v_lshl_add_u32 v4, v3, 5, v4
    s_mul_i32 s8, s3, {8*1088}
    s_add_u32 s8, s8, {KV}
    s_lshl_b32 s9, s6, 15
    s_lshl_b32 s10, s3, 13
    s_add_u32 s9, s9, s10
    s_add_u32 s9, s9, {PQ}
    s_lshl_b32 s10, s7, 17
    s_lshl_b32 s11, s3, 15
    s_add_u32 s10, s10, s11
    s_add_u32 s10, s10, {P_WO}
    """)
    tkv, tpq, two = {}, {}, {}
    for i in range(8):
        k(f"buffer_load_dwordx4 v[{KVR+8*i}:{KVR+8*i+3}], v4, {SRD_WS}, s8 offen offset:{(i%2)*1088}")
        tkv[i] = k(f"buffer_load_dwordx4 v[{KVR+8*i+4}:{KVR+8*i+7}], v4, {SRD_WS}, s8 offen offset:{(i%2)*1088+16}")
        if i % 2 == 1:
            k("s_add_u32 s8, s8, 2176")
        tpq[i] = k(f"buffer_load_dwordx4 a[{PQR+4*i}:{PQR+4*i+3}], v1, {SRD_WS}, s9 offen offset:{(i%4)*1024}")
        if i % 4 == 3:
            k("s_add_u32 s9, s9, 4096")
    for i in range(8):
        for c in range(4):
            r = (i * 4 + c) * 4
            two[(i, c)] = k(f"buffer_load_dwordx4 a[{r}:{r+3}], v1, {SRD_WS}, s10 offen offset:{c*1024}")
        k("s_add_u32 s10, s10, 4096")
    k(f"""
    s_lshl_b32 s11, s6, 15
    s_lshl_b32 s12, s7, 13
    s_add_u32 s11, s11, s12
    s_lshl_b32 s12, s3, 11
    s_add_u32 s11, s11, s12
    s_add_u32 s12, s11, {XA}
    s_add_u32 s11, s11, {X1}
    buffer_load_dwordx4 v[{RES}:{RES+3}], v1, {SRD_WS}, s12 offen
    """)
    tres = k(f"buffer_load_dwordx4 v[{RES+4}:{RES+7}], v1, {SRD_WS}, s12 offen offset:1024")
    k(f"""
    s_lshl_b32 s13, s7, 2
    s_add_u32 s13, s13, s3
    s_lshl_b32 s13, s13, 14
    s_lshl_b32 s14, s6, 8
    s_add_u32 s13, s13, s14
    s_add_u32 s13, s13, {ST_1}
    """)

    def attn_mfma(i):
        k.wait_vm(tpq[i])
        af = AF[i % 2]
        for d in range(4):
            k(f"v_cvt_pk_bf16_f32 v{af+d}, v{KVR+8*i+2*d}, v{KVR+8*i+2*d+1}")
        dd = D[i % 2]
        k(f"v_mfma_f32_32x32x16_bf16 v[{dd}:{dd+15}], v[{af}:{af+3}], a[{PQR+4*i}:{PQR+4*i+3}], 0")

    def attn_post(i):
        dd = D[i % 2]
        of = OF[i % 2]
        k(f"v_add_f32 v{dd+8}, {fx(1e-6)}, v{dd+8}")
        k(f"v_rcp_f32 v{dd+8}, v{dd+8}")
        for j in range(8):
            k(f"v_mul_f32 v{dd+j}, v{dd+j}, v{dd+8}")
        for d in range(4):
            k(f"v_cvt_pk_bf16_f32 v{of+d}, v{dd+2*d}, v{dd+2*d+1}")

    def main_mfma(i):
        of = OF[i % 2]
        for c in range(4):
            k.wait_vm(two[(i, c)])
            r = (i * 4 + c) * 4
            cin = "0" if i == 0 else f"v[{ACC[c]}:{ACC[c]+15}]"
            k(f"v_mfma_f32_32x32x16_bf16 v[{ACC[c]}:{ACC[c]+15}], a[{r}:{r+3}], v[{of}:{of+3}], {cin}")

    attn_mfma(0)
    for i in range(8):
        if i + 1 < 8:
            attn_mfma(i + 1)
        attn_post(i)
        main_mfma(i)
    a = xwave_reduce(k, ACC, 4, None)
    k.wait_vm(tres)
    out_tile_epilogue(k, a, RES, 8, 11, 13, False)
    k.label("k2_done")
    k("s_endpgm")
    return k, (256, 256, 65536)


def gen_k3():
    k = Kern("k3_kernel")
    prologue(k, 256, "k3_done")
    lane_setup(k)
    k("""
    s_and_b32 s4, s2, 7
    s_lshr_b32 s5, s2, 3
    s_and_b32 s6, s4, 1
    s_lshl_b32 s6, s6, 3
    s_and_b32 s7, s5, 7
    s_add_u32 s6, s6, s7
    s_lshr_b32 s7, s4, 1
    s_lshl_b32 s7, s7, 2
    s_lshr_b32 s5, s5, 3
    s_add_u32 s7, s7, s5
    s_lshl_b32 s8, s6, 2
    s_add_u32 s8, s8, s3
    """)
    build_ws_srd(k)
    VST = 16
    VCS = 32
    tst = load_stats(k, ST_1, 8, VST, 4, 9)
    k(f"""
    s_mul_i32 s9, s7, {7*128}
    s_lshl_b32 s10, s3, 8
    s_add_u32 s9, s9, s10
    s_add_u32 s9, s9, {CS_GU}
    v_lshlrev_b32 v4, 2, v0
    """)
    for p in range(8):
        tcs = k(f"buffer_load_dword v{VCS+p}, v4, {SRD_WS}, s9 offen")
        if p < 7:
            k(f"s_add_u32 s9, s9, {3584*4}")
    k(f"""
    s_lshl_b32 s10, s8, 15
    s_add_u32 s10, s10, {X1}
    s_mul_i32 s11, s7, {224*1024}
    s_lshl_b32 s12, s3, 12
    s_add_u32 s11, s11, s12
    s_add_u32 s11, s11, {P_GU}
    s_mov_b32 s15, s12
    """)
    stage_tok = {}

    def issue_x(s0, n):
        for s in range(s0, s0 + n):
            k(f"buffer_load_dwordx4 a[{4*s}:{4*s+3}], v1, {SRD_WS}, s10 offen offset:{(s%4)*1024}")
            if s % 4 == 3:
                k("s_add_u32 s10, s10, 4096")

    def issue_w(st):
        if st == 8:
            k("s_mov_b32 s12, s15")
        k("s_mov_b32 m0, s12")
        for i in range(4):
            stage_tok[st] = k(f"buffer_load_dwordx4 v1, {SRD_WS}, s11 offen offset:{i*1024} lds")
        k("s_add_u32 s11, s11, 16384")
        k("s_add_u32 s12, s12, 16384")

    def issue_group(st):
        if st < 8:
            issue_x(4 * st, 4)
        if st < 14:
            issue_w(st)

    for st in range(5):
        issue_group(st)
    k(f"""
    s_mul_i32 s13, s2, 136
    s_add_u32 s13, s13, {KV}
    v_mov_b32 v8, 0
    v_mov_b32 v9, 0
    v_lshlrev_b32 v10, 3, v0
    s_mov_b64 exec, 0x1ffff
    buffer_store_dwordx2 v[8:9], v10, {SRD_WS}, s13 offen
    s_mov_b64 exec, -1
    """)
    LM = 128 * 1024
    VMEAN, VRSTD = 6, 7
    k.wait_vm(tst)
    reduce_stats(k, VST, VMEAN, VRSTD, 8, 9)
    k.wait_vm(tcs)
    for st in (4, 2, 1):
        for p in range(st):
            k(f"v_add_f32 v{VCS+p}, v{VCS+p}, v{VCS+p+st}")
    k(f"""
    s_lshl_b32 s13, s3, 8
    s_add_u32 s13, s13, {LM}
    v_lshl_add_u32 v8, v0, 2, s13
    ds_write_b32 v8, v{VCS}
    v_lshlrev_b32 v9, 4, v3
    v_add_u32 v9, {LM}, v9
    v_add_u32 v5, 0x10000, v1
    """)
    c0 = -2.0 * math.sqrt(2.0 / math.pi) * LOG2E
    C1, C3, IR2 = 10, 11, 12
    k(f"""
    v_mul_f32 v{C1}, {fx(c0)}, v{VRSTD}
    v_mul_f32 v13, v{VRSTD}, v{VRSTD}
    v_mul_f32 v{C3}, {fx(0.044715)}, v13
    v_mul_f32 v{C3}, v{C3}, v{C1}
    v_rcp_f32 v{IR2}, v13
    """)
    issue_group(5)
    k.wait_lg0()
    k("s_barrier")
    ACC = [64 + 16 * t for t in range(7)]
    fl = Filler()
    def init_tile(t, direct):
        toks = []

        def rd(q):
            toks.append(k(f"ds_read_b128 v[{ACC[t]+4*q}:{ACC[t]+4*q+3}], v9 offset:{t*128+q*32}"))

        def mul(r):
            k.wait_lg(toks[r // 4])
            k(f"v_mul_f32 v{ACC[t]+r}, -v{VMEAN}, v{ACC[t]+r}")

        if direct:
            return rd, mul
        for q in range(4):
            fl.add(lambda q=q: rd(q))
        for r in range(16):
            fl.add(lambda r=r: mul(r))

    fs = [init_tile(t, True) for t in range(4)]
    for t in range(4):
        for q in range(4):
            fs[t][0](q)
        if t >= 1:
            for r in range(16):
                fs[t - 1][1](r)
    for r in range(16):
        fs[3][1](r)
    for t in range(4, 7):
        init_tile(t, False)

    k(f"""
    s_mul_i32 s13, s8, {112*1024}
    s_mul_i32 s14, s7, {7*1024}
    s_add_u32 s13, s13, s14
    s_add_u32 s13, s13, {HB}
    """)
    T0 = 16
    HP = 32

    def epilogue(t):
        a = ACC[t]
        hp = HP + 4 * (t % 2)
        for j in range(8):
            ta = T0 + 2 * (j % 4)
            tb_ = ta + 1
            fl.add(lambda j=j, ta=ta: k(f"v_mul_f32 v{ta}, v{a+j}, v{a+j}"))
            fl.add(lambda j=j, ta=ta: k(f"v_fma_f32 v{ta}, v{ta}, v{C3}, v{C1}"))
            fl.add(lambda j=j, ta=ta: k(f"v_mul_f32 v{ta}, v{ta}, v{a+j}"))
            fl.add(lambda j=j, ta=ta: k(f"v_exp_f32 v{ta}, v{ta}"), 8)
            fl.add(lambda j=j, ta=ta: k(f"v_mul_f32 v{a+j}, v{a+j}, v{a+j+8}"))
            fl.add(lambda j=j, ta=ta: k(f"v_fma_f32 v{ta}, v{ta}, v{IR2}, v{IR2}"))
            fl.add(lambda j=j, ta=ta: k(f"v_rcp_f32 v{ta}, v{ta}"), 8)
            if j % 2 == 1:
                pa = T0 + 2 * ((j - 1) % 4)
                fl.add(lambda j=j, pa=pa: k(f"v_mul_f32 v{a+j-1}, v{a+j-1}, v{pa}"))
                fl.add(lambda j=j, ta=ta: k(f"v_mul_f32 v{a+j}, v{a+j}, v{ta}"))
                fl.add(lambda j=j: k(f"v_cvt_pk_bf16_f32 v{hp+j//2}, v{a+j-1}, v{a+j}"))
        off = (t % 4) * 1024
        if t == 4:
            fl.add(lambda: k("s_add_u32 s13, s13, 4096"), 0)
        fl.add(lambda: k(f"buffer_store_dwordx4 v[{hp}:{hp+3}], v1, {SRD_WS}, s13 offen offset:{off}"))

    def stage_sync(st):
        k.wait_vm(stage_tok[st])
        k("s_barrier")
        issue_group(st + 6)

    def mfma_emit(j, w):
        if j < 128:
            s, t = j // 4, j % 4
        else:
            t, s = 4 + (j - 128) // 32, (j - 128) % 32
        k(f"v_mfma_f32_32x32x16_bf16 v[{ACC[t]}:{ACC[t]+15}], {w}, a[{4*s}:{4*s+3}], v[{ACC[t]}:{ACC[t]+15}]")

    def fill(j):
        if j == 129:
            for t in range(4):
                epilogue(t)
        if j == 161:
            epilogue(4)
        if j == 193:
            epilogue(5)
        fl.run(20)

    xstat_loop(k, 224, stage_sync, mfma_emit, fill, 128, [1, 5])
    fl.flush()
    epilogue(6)
    fl.flush()
    k.label("k3_done")
    k("s_endpgm")
    return k, (256, 256, 128 * 1024 + 1024)


def gen_k4(final):
    nm = "k4b" if final else "k4a"
    k = Kern(nm + "_kernel")
    prologue(k, 256, nm + "_done")
    lane_setup(k)
    k("""
    s_and_b32 s4, s2, 7
    s_lshr_b32 s5, s2, 3
    s_lshl_b32 s6, s4, 2
    s_lshr_b32 s7, s5, 3
    s_add_u32 s6, s6, s7
    s_and_b32 s7, s5, 7
    """)
    build_ws_srd(k)
    k(f"""
    s_mul_i32 s8, s6, {2*112*1024}
    s_mul_i32 s9, s3, {28*1024}
    s_add_u32 s8, s8, s9
    s_add_u32 s8, s8, {HB}
    s_add_u32 s9, s8, {112*1024}
    s_mul_i32 s10, s7, {224*1024}
    s_mul_i32 s11, s3, {56*1024}
    s_add_u32 s10, s10, s11
    s_add_u32 s10, s10, {P_WD}
    """)
    ACC = [16, 32, 48, 64]
    RES = 80
    RING = 15
    tok = {}

    def issue(i):
        r = (i % 16) * 16
        k(f"buffer_load_dwordx4 a[{r}:{r+3}], v1, {SRD_WS}, s8 offen offset:{(i%4)*1024}")
        k(f"buffer_load_dwordx4 a[{r+4}:{r+7}], v1, {SRD_WS}, s9 offen offset:{(i%4)*1024}")
        k(f"buffer_load_dwordx4 a[{r+8}:{r+11}], v1, {SRD_WS}, s10 offen offset:{(i%2)*2048}")
        tok[i] = k(f"buffer_load_dwordx4 a[{r+12}:{r+15}], v1, {SRD_WS}, s10 offen offset:{(i%2)*2048+1024}")
        if i % 4 == 3:
            k("s_add_u32 s8, s8, 4096")
            k("s_add_u32 s9, s9, 4096")
        if i % 2 == 1:
            k("s_add_u32 s10, s10, 4096")

    k(f"""
    s_lshr_b32 s11, s3, 1
    s_lshl_b32 s12, s6, 1
    s_add_u32 s11, s11, s12
    s_and_b32 s12, s3, 1
    s_lshl_b32 s13, s7, 1
    s_add_u32 s12, s12, s13
    s_lshl_b32 s13, s11, 15
    s_lshl_b32 s14, s12, 11
    s_add_u32 s13, s13, s14
    s_add_u32 s14, s13, {X1}
    buffer_load_dwordx4 v[{RES}:{RES+3}], v1, {SRD_WS}, s14 offen
    """)
    tres = k(f"buffer_load_dwordx4 v[{RES+4}:{RES+7}], v1, {SRD_WS}, s14 offen offset:1024")
    for i in range(RING):
        issue(i)
    if not final:
        k(f"""
        s_add_u32 s13, s13, {XA}
        s_lshl_b32 s14, s12, 14
        s_lshl_b32 s15, s11, 8
        s_add_u32 s14, s14, s15
        s_add_u32 s14, s14, {ST_A}
        """)
    else:
        srd(k, 40, 30, 2048 * 512 * 2)
        k(f"""
        s_lshl_b32 s13, s11, 15
        s_lshl_b32 s14, s12, 6
        s_add_u32 s13, s13, s14
        v_lshlrev_b32 v5, 10, v2
        v_lshl_add_u32 v5, v3, 4, v5
        """)
    for i in range(28):
        k.wait_vm(tok[i])
        r = (i % 16) * 16
        for g in range(2):
            for c in range(2):
                a = ACC[g * 2 + c]
                cin = "0" if i == 0 else f"v[{a}:{a+15}]"
                k(f"v_mfma_f32_32x32x16_bf16 v[{a}:{a+15}], a[{r+8+4*c}:{r+11+4*c}], a[{r+4*g}:{r+3+4*g}], {cin}")
        if i + RING < 28:
            issue(i + RING)
    a = xwave_reduce(k, ACC, 4, None)
    out_tile_epilogue(k, a, RES, 8, 13, 14, final, 5, "s[40:43]")
    k.label(nm + "_done")
    k("s_endpgm")
    return k, (256, 256, 65536)


HEADER = """; Kernarg layout for this problem (80 bytes, ptrs only, base s[0:1]):
"""


def build(order=None, out=None):
    ks = {}
    for nm, g in (("k0", gen_k0), ("k1", gen_k1), ("k2", gen_k2), ("k3", gen_k3),
                  ("k4a", lambda: gen_k4(False)), ("k4b", lambda: gen_k4(True))):
        ks[nm] = g()
    order = order or ["k0", "k1", "k2", "k3", "k4a", "k1", "k2", "k3", "k4b"]
    s = HEADER
    for nm in order:
        kk, (g, b, l) = ks[nm]
        s += f"; @launch kernel={kk.name} grid=({g},1,1) block=({b},1,1) lds={l}\n"
    s += '.amdgcn_target "amdgcn-amd-amdhsa--gfx950"\n.text\n'
    descs = ""
    for nm in dict.fromkeys(order):
        kk, _ = ks[nm]
        t, d = kk.full_text()
        s += t
        descs += d
        print(f"{nm}: {sum(1 for i in kk.items if not isinstance(i,str))} instrs, pads {kk.npad}, v{kk.maxv+1} a{kk.maxa+1} s{kk.maxs+1}", file=sys.stderr)
    s += '.section .rodata,"a"\n' + descs
    out = out or f"cdna_kernels/{NAME}.s"
    open(out, "w").write(s)


if __name__ == "__main__":
    build()
```

```python
import sys, struct, math, os
sys.path.insert(0, "dev")
from asmlib import Kern, Ins

NAME = "interleave_layers__linear_attn_block__glu_gated_geglu__prompt"

P_QKV = 0x000000
P_WO = 0x180000
P_GU = 0x200000
P_WD = 0x580000
CS_QKV = 0x740000
CS_GU = 0x750000
CS_DUMMY = 0x770000
CNT = 0x778000
KVB = [0x780000, 0x790000]
ST_A = [0x800000, 0x840000]
ST_1 = [0x880000, 0x8C0000]
XA = [0x900000, 0xB00000]
X1 = [0xD00000, 0xF00000]
PQ = [0x1100000, 0x1300000]
HB = [0x1500000, 0x1C00000]
STAMPBUF = 0x2300000
WS_USED = 0x2800000

ONES = 0x3F803F80
LOG2E = 1.4426950408889634
NFIRST = 2

L_RED = 96 * 1024
L_MISC = 144 * 1024
L_CSGU = L_MISC
L_CSQKV = L_MISC + 2048
L_STAT = L_MISC + 3072
L_KVP = L_MISC + 4096
LDS_TOTAL = 160 * 1024

STAMP = False
MAPB = int(os.environ.get('MAPB', '1'))
SRD_WS = "s[36:39]"
SC = " sc1"


def f2u(x):
    return struct.unpack("<I", struct.pack("<f", x))[0]


def fx(x):
    return "0x%08x" % f2u(x)


NOPF = bool(os.environ.get('NOPF'))
ROT = int(os.environ.get('ROT', '1'))
FAKEW = bool(os.environ.get('FAKEW'))
FINE = bool(os.environ.get('FINE'))
_fine_phase = [False]


def stamp(k, i, real=False, fine=None):
    import inspect
    if FINE and 3 <= i <= 6:
        caller = inspect.stack()[1].function
        outer = [f.function for f in inspect.stack()]
        if ('phase1' in outer or 'phase3' in outer) and caller != 'mfma_emit':
            return
    if STAMP:
        k(f"s_memrealtime s[{82+2*i}:{83+2*i}]" if real else f"s_memtime s[{82+2*i}:{83+2*i}]")


def stamp_flush(k, pid):
    if not STAMP:
        return
    k.wait_lg0()
    k("s_mov_b64 exec, 1")
    for i in range(10):
        k(f"v_mov_b32 v{16+i}, s{82+2*i}")
    k(f"""
    s_lshl_b32 s4, s2, 2
    s_add_u32 s4, s4, s3
    s_lshl_b32 s4, s4, 6
    s_add_u32 s4, s4, {STAMPBUF + pid*0x10000}
    v_mov_b32 v26, 0
    buffer_store_dwordx4 v[16:19], v26, {SRD_WS}, s4 offen
    buffer_store_dwordx4 v[20:23], v26, {SRD_WS}, s4 offen offset:16
    buffer_store_dwordx2 v[24:25], v26, {SRD_WS}, s4 offen offset:32
    s_mov_b64 exec, -1
    s_nop 1
    """)
    for i in range(10):
        k(f"s_mov_b32 s{82+2*i}, 0")


def prologue(k, nwg, done):
    if STAMP:
        for i in range(10):
            k(f"s_mov_b32 s{82+2*i}, 0")
    stamp(k, 0, True)
    stamp(k, 1)
    k(f"""
    s_cmp_ge_u32 s2, {nwg}
    s_cbranch_scc1 {done}
    s_load_dwordx16 s[16:31], s[0:1], 0
    s_load_dwordx4 s[32:35], s[0:1], 64
    """)


def build_ws_srd(k):
    k(f"""
    s_waitcnt lgkmcnt(0)
    s_mov_b32 s36, s34
    s_mov_b32 s37, s35
    s_mov_b32 s38, {WS_USED}
    s_mov_b32 s39, 0x20000
    """)


def srd(k, d, base, nbytes):
    k(f"""
    s_mov_b32 s{d}, s{base}
    s_mov_b32 s{d+1}, s{base+1}
    s_mov_b32 s{d+2}, {nbytes}
    s_mov_b32 s{d+3}, 0x20000
    """)


def xhalf_add(k, v, ta, tb):
    k(f"v_mov_b32 v{ta}, v{v}")
    k(f"v_mov_b32 v{tb}, v{v}")
    k(f"v_permlane32_swap_b32 v{ta}, v{tb}")
    k(f"v_add_f32 v{v}, v{ta}, v{tb}")


def gen_k0():
    k = Kern("k0_kernel")
    NJ = 592
    prologue(k, NJ, "k0_done")
    build_ws_srd(k)
    k("""
    s_cmp_ge_u32 s2, 464
    s_cbranch_scc1 k0_x
    s_cmp_ge_u32 s2, 352
    s_cbranch_scc1 k0_wd
    s_cmp_ge_u32 s2, 320
    s_cbranch_scc1 k0_wo
    s_cmp_ge_u32 s2, 224
    s_cbranch_scc1 k0_qkv
    """)
    srd(k, 40, 24, 512 * 1792 * 2)
    srd(k, 44, 26, 512 * 1792 * 2)
    k(f"""
    s_lshr_b32 s70, s2, 3
    s_and_b32 s71, s2, 7
    s_mov_b32 s60, 3584
    s_mul_i32 s61, s71, {64*3584}
    s_lshl_b32 s72, s70, 7
    s_add_u32 s61, s61, s72
    s_mov_b32 s62, s61
    s_mov_b32 s63, 8192
    s_mov_b32 s64, 0
    s_mov_b32 s65, 32
    s_mov_b32 s66, 64
    s_mov_b32 s67, 96
    """)
    for q in range(4):
        k(f"""
        s_lshl_b32 s72, s70, 2
        s_add_u32 s72, s72, {q}
        s_mul_i32 s73, s72, 9363
        s_lshr_b32 s73, s73, 16
        s_mul_i32 s74, s73, 7
        s_sub_u32 s74, s72, s74
        s_sub_u32 s78, s71, s73
        s_and_b32 s78, s78, {7 if ROT else 0}
        s_cselect_b32 s78, s78, s78
        {"" if ROT else "s_mov_b32 s78, s71"}
        s_mul_i32 s75, s78, {4*NFIRST}
        s_add_u32 s75, s75, s74
        s_lshl_b32 s76, s74, 5
        s_lshl_b32 s77, s78, 2
        s_add_u32 s76, s76, s77
        s_cmp_lt_u32 s74, {NFIRST}
        s_cselect_b32 s75, s75, s76
        s_cselect_b32 s{52+q}, {NFIRST}, 1
        s_lshl_b32 s{52+q}, s{52+q}, 10
        s_lshl_b32 s75, s75, 10
        s_mul_i32 s73, s73, {224*1024}
        s_add_u32 s75, s75, s73
        s_add_u32 s{48+q}, s75, {P_GU}
        s_mul_i32 s75, s71, {3584*4}
        s_lshl_b32 s72, s72, 7
        s_add_u32 s75, s75, s72
        s_add_u32 s{56+q}, s75, {CS_GU}
        """)
    k("s_branch k0_pack")
    k.label("k0_qkv")
    srd(k, 40, 18, 512 * 1536 * 2)
    srd(k, 44, 18, 512 * 1536 * 2)
    k(f"""
    s_sub_u32 s69, s2, 224
    s_lshr_b32 s70, s69, 3
    s_and_b32 s71, s69, 7
    s_mov_b32 s60, 3072
    s_mul_i32 s61, s71, {64*3072}
    s_lshl_b32 s72, s70, 8
    s_add_u32 s61, s61, s72
    s_add_u32 s62, s61, 128
    s_lshr_b32 s73, s70, 2
    s_and_b32 s74, s70, 3
    s_sub_u32 s78, s73, 1
    s_lshl_b32 s78, s78, 7
    s_sub_u32 s81, s73, 1
    s_cmp_eq_u32 s73, 0
    s_cselect_b32 s77, 1, 2
    s_cselect_b32 s78, 256, s78
    s_cselect_b32 s81, 64, s81
    s_mul_i32 s79, s71, 6144
    s_add_u32 s78, s78, s79
    """)
    for q in range(4):
        k(f"""
        s_lshl_b32 s72, s74, 2
        s_add_u32 s72, s72, {q}
        s_sub_u32 s75, s71, s72
        s_and_b32 s75, s75, 7
        {"" if ROT else "s_mov_b32 s75, s71"}
        s_lshl_b32 s75, s75, 2
        s_mul_i32 s75, s75, s77
        s_add_u32 s75, s75, s81
        s_lshl_b32 s75, s75, 10
        s_mul_i32 s76, s72, {96*1024}
        s_add_u32 s76, s76, s75
        s_add_u32 s{48+q}, s76, {P_QKV}
        s_lshl_b32 s{52+q}, s77, 10
        s_mul_i32 s76, s72, 384
        s_add_u32 s76, s76, s78
        s_add_u32 s{56+q}, s76, {CS_QKV}
        """)
    k("s_branch k0_plain")
    k.label("k0_wo")
    srd(k, 40, 20, 512 * 512 * 2)
    srd(k, 44, 20, 512 * 512 * 2)
    k(f"""
    s_sub_u32 s69, s2, 320
    s_lshr_b32 s70, s69, 3
    s_and_b32 s71, s69, 7
    s_mov_b32 s60, 1024
    s_lshl_b32 s61, s71, 16
    s_lshl_b32 s72, s70, 8
    s_add_u32 s61, s61, s72
    s_add_u32 s62, s61, 128
    s_lshl_b32 s75, s70, 17
    s_lshl_b32 s76, s71, 14
    s_add_u32 s75, s75, s76
    """)
    for q in range(4):
        k(f"""
        s_add_u32 s{48+q}, s75, {P_WO + q*1024}
        s_mov_b32 s{52+q}, 4096
        s_mov_b32 s{56+q}, {CS_DUMMY}
        """)
    k("s_branch k0_plain")
    k.label("k0_wd")
    srd(k, 40, 28, 1792 * 512 * 2)
    srd(k, 44, 28, 1792 * 512 * 2)
    k(f"""
    s_sub_u32 s69, s2, 352
    s_and_b32 s70, s69, 3
    s_lshr_b32 s71, s69, 2
    s_mov_b32 s60, 1024
    s_lshl_b32 s61, s71, 16
    s_lshl_b32 s72, s70, 8
    s_add_u32 s61, s61, s72
    s_add_u32 s62, s61, 128
    s_mul_i32 s73, s71, 9363
    s_lshr_b32 s73, s73, 16
    s_mul_i32 s74, s73, 7
    s_sub_u32 s76, s71, s74
    """)
    for q in range(4):
        k(f"""
        s_lshl_b32 s77, s70, 1
        s_add_u32 s77, s77, {q>>1}
        s_cmp_eq_u32 s77, 7
        s_cselect_b32 s78, 0, s77
        {"" if ROT else "s_mov_b32 s78, 0"}
        s_sub_i32 s78, s76, s78
        s_add_i32 s79, s78, 7
        s_cmp_lt_i32 s78, 0
        s_cselect_b32 s78, s79, s78
        s_add_u32 s78, s78, s74
        s_lshl_b32 s78, s78, 13
        s_mul_i32 s77, s77, {224*1024}
        s_add_u32 s78, s78, s77
        s_add_u32 s{48+q}, s78, {P_WD + (q&1)*1024}
        s_mov_b32 s{52+q}, 2048
        s_mov_b32 s{56+q}, {CS_DUMMY}
        """)
    k.label("k0_plain")
    k("""
    s_mov_b32 s63, 32
    s_mov_b32 s64, 0
    s_mov_b32 s65, 64
    s_mov_b32 s66, 8192
    s_mov_b32 s67, 8256
    """)
    k.label("k0_pack")
    k(f"""
    v_lshrrev_b32 v1, 3, v0
    v_mul_lo_u32 v1, v1, s60
    v_and_b32 v8, 7, v0
    v_lshl_add_u32 v1, v8, 4, v1
    s_lshl_b32 s68, s60, 3
    """)
    for part in range(2):
        so = 61 + part
        sr = "s[40:43]" if part == 0 else "s[44:47]"
        for g in range(8):
            k(f"s_mov_b32 m0, {part*8192 + g*1024}")
            k(f"buffer_load_dwordx4 v1, {sr}, s{so} offen lds")
            if g < 7:
                k(f"s_add_u32 s{so}, s{so}, s68")
    k(f"""
    v_bfe_u32 v8, v0, 4, 1
    v_mul_lo_u32 v8, v8, s63
    v_lshrrev_b32 v9, 5, v0
    v_lshlrev_b32 v9, 2, v9
    v_bfe_u32 v10, v0, 2, 2
    v_add_u32 v9, v9, v10
    v_lshl_add_u32 v8, v9, 7, v8
    v_and_b32 v10, 3, v0
    v_lshl_add_u32 v8, v10, 3, v8
    v_add_u32 v2, s64, v8
    v_add_u32 v3, s65, v8
    v_add_u32 v4, s66, v8
    v_add_u32 v5, s67, v8
    v_lshlrev_b32 v6, 4, v0
    v_and_b32 v7, 31, v0
    v_lshlrev_b32 v7, 2, v7
    v_mov_b32 v11, {hex(ONES)}
    v_mov_b32 v12, 0
    v_mov_b32 v13, 0
    v_mov_b32 v14, 0
    v_mov_b32 v15, 0
    """)
    k.wait_vm0()
    toks = {}
    for q in range(4):
        for u in range(4):
            r = 16 + (q * 4 + u) * 4
            k(f"ds_read_b64_tr_b16 v[{r}:{r+1}], v{2+q} offset:{(16*u)*128}")
            toks[(q, u)] = k(f"ds_read_b64_tr_b16 v[{r+2}:{r+3}], v{2+q} offset:{(16*u+8)*128}")
        for u in range(4):
            r = 16 + (q * 4 + u) * 4
            k.wait_lg(toks[(q, u)])
            k(f"buffer_store_dwordx4 v[{r}:{r+3}], v6, {SRD_WS}, s{48+q} offen")
            if u < 3:
                k(f"s_add_u32 s{48+q}, s{48+q}, s{52+q}")
            for d in range(4):
                k(f"v_dot2_f32_bf16 v{12+q}, v{r+d}, v11, v{12+q}")
    for q in range(4):
        xhalf_add(k, 12 + q, 8, 9)
        k(f"buffer_store_dword v{12+q}, v7, {SRD_WS}, s{56+q} offen")
    k("s_endpgm")
    k.label("k0_x")
    srd(k, 40, 16, 2048 * 512 * 2)
    k(f"""
    s_sub_u32 s69, s2, 464
    s_lshr_b32 s70, s69, 1
    s_and_b32 s71, s69, 1
    s_lshl_b32 s61, s70, 15
    s_lshl_b32 s72, s71, 9
    s_add_u32 s61, s61, s72
    v_and_b32 v1, 31, v0
    v_lshlrev_b32 v7, 3, v1
    v_lshlrev_b32 v1, 10, v1
    v_lshrrev_b32 v8, 5, v0
    v_lshl_add_u32 v1, v8, 4, v1
    v_lshlrev_b32 v6, 4, v0
    v_mov_b32 v11, {hex(ONES)}
    """)
    lt = []
    for c in range(16):
        r = 16 + c * 4
        lt.append(k(f"buffer_load_dwordx4 v[{r}:{r+3}], v1, s[40:43], s61 offen offset:{c*32}"))
    k(f"""
    s_mul_i32 s73, s69, 272
    s_add_u32 s74, s73, {KVB[1]}
    s_add_u32 s73, s73, {KVB[0]}
    s_lshl_b32 s75, s69, 8
    s_add_u32 s75, s75, {CNT}
    v_mov_b32 v80, 0
    v_mov_b32 v81, 0
    v_mov_b32 v82, 0
    v_mov_b32 v83, 0
    s_mov_b64 exec, 0x1ffff
    buffer_store_dwordx4 v[80:83], v6, {SRD_WS}, s73 offen
    buffer_store_dwordx4 v[80:83], v6, {SRD_WS}, s74 offen
    s_mov_b64 exec, 0xffff
    buffer_store_dwordx4 v[80:83], v6, {SRD_WS}, s75 offen
    s_mov_b64 exec, -1
    s_lshl_b32 s62, s70, 15
    s_lshl_b32 s72, s71, 14
    s_add_u32 s62, s62, s72
    s_add_u32 s62, s62, {XA[0]}
    s_lshl_b32 s63, s71, 17
    s_lshl_b32 s72, s70, 8
    s_add_u32 s63, s63, s72
    s_add_u32 s63, s63, {ST_A[0]}
    """)
    for p in range(8):
        k("v_mov_b32 v12, 0")
        k("v_mov_b32 v13, 0")
        for c in (2 * p, 2 * p + 1):
            r = 16 + c * 4
            k.wait_vm(lt[c])
            k(f"v_permlane32_swap_b32 v{r}, v{r+2}")
            k(f"v_permlane32_swap_b32 v{r+1}, v{r+3}")
            k(f"buffer_store_dwordx4 v[{r}:{r+3}], v6, {SRD_WS}, s62 offen offset:{(c%4)*1024}")
            if c % 4 == 3:
                k("s_add_u32 s62, s62, 4096")
            for d in range(4):
                k(f"v_dot2_f32_bf16 v12, v{r+d}, v11, v12")
                k(f"v_dot2_f32_bf16 v13, v{r+d}, v{r+d}, v13")
        xhalf_add(k, 12, 8, 9)
        xhalf_add(k, 13, 8, 9)
        k(f"buffer_store_dwordx2 v[12:13], v7, {SRD_WS}, s63 offen")
        k("s_add_u32 s63, s63, 16384")
        k("s_nop 1")
    k.label("k0_done")
    k("s_endpgm")
    return k, (NJ, 64, 16384)


def common_setup(k):
    k("""
    v_lshrrev_b32 v3, 6, v0
    v_and_b32 v0, 63, v0
    v_readfirstlane_b32 s3, v3
    v_lshlrev_b32 v1, 4, v0
    v_and_b32 v2, 31, v0
    v_lshrrev_b32 v3, 5, v0
    v_add_u32 v5, 0x10000, v1
    s_lshl_b32 s50, s3, 12
    s_mov_b32 s52, -1
    s_mov_b32 s53, 0
    s_and_b32 s4, s2, 7
    s_lshr_b32 s5, s2, 3
    """)
    b = MAPB
    k(f"""
    s_lshr_b32 s44, s4, {b}
    s_lshl_b32 s44, s44, {b+1}
    s_lshr_b32 s6, s5, {4-b}
    s_add_u32 s44, s44, s6
    s_and_b32 s45, s4, {(1<<b)-1}
    s_lshl_b32 s45, s45, {4-b}
    s_and_b32 s6, s5, {(1<<(4-b))-1}
    s_add_u32 s45, s45, s6
    """)
    build_ws_srd(k)


def load_stats(k, st_base, s_tb, vdst, vaddr, stmp):
    k(f"""
    v_lshlrev_b32 v{vaddr}, 17, v3
    v_lshl_add_u32 v{vaddr}, v2, 3, v{vaddr}
    s_lshl_b32 s{stmp}, s{s_tb}, 8
    s_add_u32 s{stmp}, s{stmp}, {st_base}
    """)
    tok = None
    for p in range(8):
        tok = k(f"buffer_load_dwordx2 v[{vdst+2*p}:{vdst+2*p+1}], v{vaddr}, {SRD_WS}, s{stmp} offen{SC}")
        if p < 7:
            k(f"s_add_u32 s{stmp}, s{stmp}, 16384")
    return tok


def reduce_stats(k, vsrc, vmean, vrstd, ta, tb):
    for st in (4, 2, 1):
        for p in range(st):
            k(f"v_add_f32 v{vsrc+2*p}, v{vsrc+2*p}, v{vsrc+2*(p+st)}")
            k(f"v_add_f32 v{vsrc+2*p+1}, v{vsrc+2*p+1}, v{vsrc+2*(p+st)+1}")
    xhalf_add(k, vsrc, ta, tb)
    xhalf_add(k, vsrc + 1, ta, tb)
    k(f"""
    v_mul_f32 v{vmean}, {fx(1.0/512)}, v{vsrc}
    v_mul_f32 v{vsrc+1}, {fx(1.0/512)}, v{vsrc+1}
    v_fma_f32 v{vsrc+1}, -v{vmean}, v{vmean}, v{vsrc+1}
    v_max_f32 v{vsrc+1}, 0, v{vsrc+1}
    v_add_f32 v{vsrc+1}, {fx(1e-5)}, v{vsrc+1}
    v_rsq_f32 v{vrstd}, v{vsrc+1}
    """)


VMW = 3
BUDGET = int(os.environ.get('BUDGET', '6'))


def slot_w(it):
    if isinstance(it, str):
        return 0
    if it.cls == "mfma" or it.is_trans:
        return 2
    if it.cls == "nop":
        return it.nstates
    if it.cls in ("vload", "vstore"):
        return VMW
    return 1


class Sched:
    def __init__(self, k, budget=None):
        self.k = k
        self.budget = budget or BUDGET
        self.q = {-1: [], 0: [], 1: []}
        self.mark = len(k.items)
        self.period = 2.5
        self.credit = 0.0
        self.tick = 0
        self.uper = 2

    def add(self, text_or_fn, pri=1):
        self.q[pri].append(text_or_fn)

    def addm(self, lines, pri=1):
        for l in lines:
            self.q[pri].append(l)

    def used(self):
        return sum(slot_w(i) for i in self.k.items[self.mark:])

    def mfma_issued(self):
        self.mark = len(self.k.items)

    def _pop(self, pri):
        x = self.q[pri].pop(0)
        if callable(x):
            x()
        else:
            self.k(x)

    def popmem(self):
        self._pop(-1 if self.q[-1] else 0)

    def run(self, reserve=0):
        self.credit = min(self.credit + 1.0 / self.period, 1.5)
        self.tick += 1
        if self.q[-1]:
            if self.tick % self.uper == 1 % self.uper:
                self._pop(-1)
            self.credit = 0.0
        elif self.q[0] and self.credit >= 1.0:
            self._pop(0)
            self.credit -= 1.0
        while self.q[1] and self.used() < self.budget - reserve:
            self._pop(1)

    def flush(self, pri=(-1, 0, 1)):
        for p in pri:
            while self.q[p]:
                self._pop(p)


def out_tile_epilogue(k, acc, res, vt, s_out, st_soff, final, vaddr_out=None, srd_out=None):
    for d in range(8):
        k(f"v_lshlrev_b32 v{vt}, 16, v{res+d}")
        k(f"v_and_b32 v{vt+1}, 0xffff0000, v{res+d}")
        k(f"v_add_f32 v{acc+2*d}, v{acc+2*d}, v{vt}")
        k(f"v_add_f32 v{acc+2*d+1}, v{acc+2*d+1}, v{vt+1}")
        k(f"v_cvt_pk_bf16_f32 v{res+d}, v{acc+2*d}, v{acc+2*d+1}")
    if not final:
        k(f"buffer_store_dwordx4 v[{res}:{res+3}], v1, {SRD_WS}, s{s_out} offen{SC}")
        k(f"buffer_store_dwordx4 v[{res+4}:{res+7}], v1, {SRD_WS}, s{s_out} offen offset:1024{SC}")
        k(f"v_mov_b32 v{vt}, 0")
        k(f"v_mov_b32 v{vt+1}, 0")
        k(f"v_mov_b32 v{vt+2}, {hex(ONES)}")
        for d in range(8):
            k(f"v_dot2_f32_bf16 v{vt}, v{res+d}, v{vt+2}, v{vt}")
            k(f"v_dot2_f32_bf16 v{vt+1}, v{res+d}, v{res+d}, v{vt+1}")
        xhalf_add(k, vt, vt + 2, vt + 3)
        xhalf_add(k, vt + 1, vt + 2, vt + 3)
        k(f"v_lshlrev_b32 v{vt+2}, 3, v2")
        k("s_mov_b32 exec_hi, 0")
        k(f"buffer_store_dwordx2 v[{vt}:{vt+1}], v{vt+2}, {SRD_WS}, s{st_soff} offen{SC}")
        k("s_mov_b64 exec, -1")
    else:
        for b in range(2):
            r = res + 4 * b
            k(f"v_permlane32_swap_b32 v{r}, v{r+2}")
            k(f"v_permlane32_swap_b32 v{r+1}, v{r+3}")
            k(f"buffer_store_dwordx4 v[{r}:{r+3}], v{vaddr_out}, {srd_out}, s{s_out} offen offset:{b*32}")


def xwave_reduce(k, accs, tmp, va):
    for i in range(1, 4):
        k(f"""
        s_xor_b32 s4, s3, {i}
        s_mul_i32 s4, s4, 12288
        s_add_u32 s4, s4, {L_RED + (i-1)*4096}
        v_add_u32 v{va}, s4, v1
        """)
        for q in range(4):
            k(f"ds_write_b128 v{va}, v[{accs[i]+4*q}:{accs[i]+4*q+3}] offset:{q*1024}")
    k(f"""
    s_mul_i32 s4, s3, 12288
    s_add_u32 s4, s4, {L_RED}
    v_add_u32 v{va}, s4, v1
    """)
    k.wait_lg0()
    k("s_barrier")
    toks = {}
    for q in range(4):
        for j in range(3):
            r = tmp + j * 16 + 4 * q
            toks[(j, q)] = k(f"ds_read_b128 v[{r}:{r+3}], v{va} offset:{j*4096+q*1024}")
    for q in range(4):
        k.wait_lg(toks[(1, q)])
        for i in range(4):
            r = 4 * q + i
            k(f"v_add_f32 v{tmp+r}, v{tmp+r}, v{tmp+16+r}")
        k.wait_lg(toks[(2, q)])
        for i in range(4):
            r = 4 * q + i
            k(f"v_add_f32 v{accs[0]+r}, v{accs[0]+r}, v{tmp+32+r}")
        for i in range(4):
            r = 4 * q + i
            k(f"v_add_f32 v{accs[0]+r}, v{accs[0]+r}, v{tmp+r}")
    return accs[0]


def xstat_loop(k, sc, items, stage_sync, mfma_emit, fill, ring_frags, vcs, D=7, NW=8, B=4, wbase=128):
    vl = [1, 5]
    tok = {}
    N = len(items)

    def rd(n):
        if n >= N:
            return
        kind, idx, _ = items[n]
        wr = wbase + (n % NW) * 4
        if kind == "w":
            if idx % 16 == 0:
                stage_sync(idx // 16)
            off = (idx % ring_frags) * 1024
            tok[n] = k(f"ds_read_b128 a[{wr}:{wr+3}], v{vl[off >> 16]} offset:{off & 0xffff}")
        else:
            tok[n] = k(f"ds_read_b64 a[{wr}:{wr+1}], v{vcs} offset:{idx*256}")

    for n in range(D):
        rd(n)
    for j in range(N):
        if j % B == 0:
            k.wait_lg(tok[min(j + B - 1, N - 1)])
        wr = wbase + (j % NW) * 4
        mfma_emit(j, items[j], f"a[{wr}:{wr+3}]")
        sc.mfma_issued()
        rd(j + D)
        fill(j, items[j])
        sc.run(reserve=1 if (j + 1) % B == 0 else 0)


def mean_frag(side, vmean, mf):
    side(f"""
    v_sub_f32 v{mf+2}, 0, v{vmean}
    v_cndmask_b32 v{mf+2}, 0, v{mf+2}, s[52:53]
    v_cvt_pk_bf16_f32 v{mf}, v{mf+2}, v{mf+2}
    v_lshlrev_b32 v{mf+3}, 16, v{mf}
    v_sub_f32 v{mf+3}, v{mf+2}, v{mf+3}
    v_cvt_pk_bf16_f32 v{mf+1}, v{mf+3}, 0
    v_mov_b32 v{mf+2}, 0
    v_mov_b32 v{mf+3}, 0
    """)


class XLoader:
    def __init__(self, k, base_const, s_tb):
        self.k = k
        self.tok = {}
        k(f"""
        s_lshl_b32 s12, s{s_tb}, 15
        s_add_u32 s12, s12, {base_const}
        s_and_b32 s15, s45, {7 if ROT else 0}
        s_lshl_b32 s15, s15, 12
        s_add_u32 s10, s12, s15
        """)

    def issue(self, s):
        k = self.k
        self.tok[s] = k(f"buffer_load_dwordx4 a[{4*s}:{4*s+3}], v1, {SRD_WS}, s10 offen offset:{(s%4)*1024}{SC}")
        if s % 4 == 3 and s < 31:
            k("""
            s_add_u32 s15, s15, 4096
            s_and_b32 s15, s15, 0x7fff
            s_add_u32 s10, s12, s15
            """)


class WStream:
    def __init__(self, k, s_base, ring_stages):
        self.k, self.s_base, self.ring = k, s_base, ring_stages
        self.tok = {}

    def start(self, base_const, per_idx):
        self.k(f"""
        s_mul_i32 s{self.s_base}, s45, {0 if FAKEW else per_idx}
        s_add_u32 s{self.s_base}, s{self.s_base}, {base_const}
        """)
        self.tok = {}

    def pieces(self, st):
        k = self.k

        def first():
            k(f"s_add_u32 s51, s{self.s_base}, s50")
            k(f"s_add_u32 s51, s51, {st*16384}")
            k(f"s_add_u32 m0, s50, {(st % self.ring)*16384}")
            k(f"buffer_load_dwordx4 v1, {SRD_WS}, s51 offen lds")

        def rest(i):
            t = k(f"buffer_load_dwordx4 v1, {SRD_WS}, s51 offen offset:{i*1024} lds")
            if i == 3:
                self.tok[st] = t

        return [first] + [lambda i=i: rest(i) for i in (1, 2, 3)]

    def issue(self, st):
        for f in self.pieces(st):
            f()

    def issue_by_stage(self, st0, nst=3):
        k = self.k
        _lab[0] += 1
        L = f"bys{_lab[0]}"
        k(f"""
        s_sub_u32 s4, s3, 1
        s_cmp_ge_u32 s4, {nst}
        s_cbranch_scc1 {L}
        s_lshl_b32 s4, s4, 14
        s_add_u32 s51, s{self.s_base}, s4
        s_add_u32 s51, s51, {st0*16384}
        s_add_u32 s4, s4, {(st0 % self.ring)*16384}
        """)
        for q in range(4):
            k("s_mov_b32 m0, s4")
            for i in range(4):
                t = k(f"buffer_load_dwordx4 v1, {SRD_WS}, s51 offen offset:{i*1024} lds")
            if q < 3:
                k("s_add_u32 s51, s51, 4096")
                k("s_add_u32 s4, s4, 4096")
        k.label(L)
        for st in range(st0, st0 + nst):
            self.tok[st] = t


_lab = [0]


def raw(k, text):
    for line in text.strip().split("\n"):
        line = line.strip()
        if not line:
            continue
        if line.endswith(":"):
            k.label(line[:-1])
            continue
        i = Ins(line)
        for kk, r in i.wr | i.rd:
            if kk == "v":
                k.maxv = max(k.maxv, r)
            elif kk == "s" and r < 102:
                k.maxs = max(k.maxs, r)
        k.items.append(i)


def signal(k, sid, glob=False):
    _lab[0] += 1
    L = f"sig{_lab[0]}"
    k.wait_vm0()
    k("s_barrier")
    if glob:
        raw(k, f"""
        s_cmp_lg_u32 s3, 0
        s_cbranch_scc1 {L}
        s_lshl_b32 s4, s44, 8
        s_add_u32 s4, s4, {CNT + sid*4096}
        v_mov_b32 v8, 1
        v_mov_b32 v9, 0
        s_mov_b64 exec, 1
        buffer_atomic_add v8, v9, {SRD_WS}, s4 offen sc0 sc1
        s_waitcnt vmcnt(0)
        v_readfirstlane_b32 s5, v8
        s_mov_b64 exec, -1
        s_cmp_lg_u32 s5, 15
        s_cbranch_scc1 {L}
        s_mov_b32 s4, {CNT + (sid+1)*4096}
        v_mov_b32 v8, 1
        v_lshlrev_b32 v9, 8, v0
        s_mov_b64 exec, 0xffff
        buffer_atomic_add v8, v9, {SRD_WS}, s4 offen sc1
        s_mov_b64 exec, -1
        {L}:
        """)
        return
    raw(k, f"""
    s_cmp_lg_u32 s3, 0
    s_cbranch_scc1 {L}
    s_lshl_b32 s4, s44, 8
    s_add_u32 s4, s4, {CNT + sid*4096}
    v_mov_b32 v8, 1
    v_mov_b32 v9, 0
    s_mov_b64 exec, 1
    buffer_atomic_add v8, v9, {SRD_WS}, s4 offen sc1
    s_mov_b64 exec, -1
    {L}:
    """)


def wait_sync(k, sid, all_clusters):
    _lab[0] += 1
    L = f"wt{_lab[0]}"
    if all_clusters:
        setup = f"""
        s_mov_b32 s4, {CNT + sid*4096}
        v_lshlrev_b32 v9, 8, v0
        s_mov_b64 exec, 0xffff
        """
    else:
        setup = f"""
        s_lshl_b32 s4, s44, 8
        s_add_u32 s4, s4, {CNT + sid*4096}
        v_mov_b32 v9, 0
        s_mov_b64 exec, 1
        """
    raw(k, f"""
    s_cmp_lg_u32 s3, 0
    s_cbranch_scc1 {L}_done
    {setup}
    s_mov_b32 s5, 0
    {L}_loop:
    buffer_load_dword v8, v9, {SRD_WS}, s4 offen sc1
    s_add_u32 s5, s5, 1
    s_waitcnt vmcnt(0)
    v_cmp_gt_u32 vcc, 16, v8
    s_cmp_gt_u32 s5, 0x40000
    s_cbranch_scc1 {L}_out
    s_nop 1
    s_cbranch_vccnz {L}_loop
    {L}_out:
    s_mov_b64 exec, -1
    {L}_done:
    """)
    k("s_barrier")


def cs_prep(k, gu, qkv, B0):
    toks = []
    if gu:
        k(f"""
        s_mul_i32 s9, s45, {7*128}
        s_lshl_b32 s10, s3, 8
        s_add_u32 s9, s9, s10
        s_add_u32 s9, s9, {CS_GU}
        v_lshlrev_b32 v220, 2, v0
        """)
        for p in range(8):
            t = k(f"buffer_load_dword v{B0+p}, v220, {SRD_WS}, s9 offen")
            if p < 7:
                k(f"s_add_u32 s9, s9, {3584*4}")
    if qkv:
        k(f"""
        s_mul_i32 s9, s45, 384
        s_and_b32 s10, s3, 1
        s_lshl_b32 s10, s10, 8
        s_add_u32 s9, s9, s10
        s_add_u32 s9, s9, {CS_QKV}
        v_lshlrev_b32 v220, 2, v0
        """)
        for p in range(8):
            t = k(f"buffer_load_dword v{B0+8+p}, v220, {SRD_WS}, s9 offen")
            if p < 7:
                k("s_add_u32 s9, s9, 6144")

    def fin():
        k.wait_vm(t)
        for base, on in ((B0, gu), (B0 + 8, qkv)):
            if not on:
                continue
            for st in (4, 2, 1):
                for p in range(st):
                    k(f"v_add_f32 v{base+p}, v{base+p}, v{base+p+st}")
        for base, on, lb, wm in ((B0, gu, L_CSGU, 3), (B0 + 8, qkv, L_CSQKV, 1)):
            if not on:
                continue
            k(f"""
            v_cvt_pk_bf16_f32 v{base+3}, v{base}, 0
            s_and_b32 s9, s3, {wm}
            s_lshl_b32 s9, s9, 9
            v_lshlrev_b32 v{base+1}, 16, v{base+3}
            v_sub_f32 v{base+1}, v{base}, v{base+1}
            s_add_u32 s9, s9, {lb}
            v_cvt_pk_bf16_f32 v{base+2}, v{base}, v{base+1}
            v_lshl_add_u32 v4, v0, 3, s9
            ds_write_b64 v4, v[{base+2}:{base+3}]
            """)

    return fin


def wo_reg(idx):
    return f"a[{160+4*idx}:{163+4*idx}]" if idx < 24 else f"v[{224+4*(idx-24)}:{227+4*(idx-24)}]"


def wd_reg(idx):
    if idx < 24:
        return f"a[{160+4*idx}:{163+4*idx}]"
    if idx < 44:
        return f"v[{176+4*(idx-24)}:{179+4*(idx-24)}]"
    if idx < 52:
        return f"a[{128+4*(idx-44)}:{131+4*(idx-44)}]"
    return f"v[{96+4*(idx-52)}:{99+4*(idx-52)}]"


class WoPref:
    def __init__(self, k):
        self.k = k
        self.tok = {}
        self.next = 0

    def start(self):
        k = self.k
        k(f"""
        s_and_b32 s4, s45, {0 if FAKEW else 3}
        s_lshl_b32 s46, s4, 17
        s_lshl_b32 s4, s3, 15
        s_add_u32 s46, s46, s4
        s_add_u32 s46, s46, {P_WO}
        """)
        for i in range(4):
            k(f"s_xor_b32 s4, s3, {i}")
            k(f"s_lshl_b32 s4, s4, 10")
            k(f"v_add_u32 v{216+i}, s4, v1")
        self.tok = {}
        self.next = 0

    def issue(self, n=1):
        k = self.k
        for _ in range(n):
            idx = self.next
            if idx >= 32:
                return
            self.next += 1
            self.tok[idx] = k(f"buffer_load_dwordx4 {wo_reg(idx)}, v{216+idx%4}, {SRD_WS}, s46 offen")
            if idx % 4 == 3:
                k("s_add_u32 s46, s46, 4096")


class WdPref:
    def __init__(self, k):
        self.k = k
        self.tok = {}
        self.next = 0

    def start(self):
        k = self.k
        k(f"""
        s_and_b32 s4, s45, {0 if FAKEW else 7}
        s_mul_i32 s47, s4, {224*1024}
        s_mul_i32 s4, s3, {56*1024}
        s_add_u32 s47, s47, s4
        s_add_u32 s47, s47, {P_WD}
        s_and_b32 s4, s3, 1
        s_lshl_b32 s4, s4, 10
        v_add_u32 v14, s4, v1
        v_xor_b32 v15, 0x400, v14
        """)
        self.tok = {}
        self.next = 0

    def issue(self, n=1, limit=56):
        k = self.k
        for _ in range(n):
            idx = self.next
            if idx >= limit:
                return
            self.next += 1
            self.tok[idx] = k(f"buffer_load_dwordx4 {wd_reg(idx)}, v{14+idx%2}, {SRD_WS}, s47 offen offset:{((idx//2)%2)*2048}")
            if idx % 4 == 3:
                k("s_add_u32 s47, s47, 4096")


def phase1(k, l, ws, wop, standalone=False, cs_fin=None):
    k.comment(f"==== P1 layer {l}")
    k("""
    s_lshl_b32 s8, s44, 2
    s_add_u32 s8, s8, s3
    """)
    AK, AV, AQ = 64, 80, 96
    VST = 16
    xl = XLoader(k, XA[l], 8)
    sc = Sched(k)
    XPRE = 11
    for s in range(XPRE):
        xl.issue(s)
        if standalone and s in (3, 7):
            ws.issue(s // 4)
    if standalone:
        cs_fin()
        k.wait_lg0()
        k("s_barrier")
        sc.uper = 1
    tstb = []
    for s in range(XPRE, 32):
        sc.add(lambda s=s: xl.issue(s), -1)
        if standalone and s % 4 == 3 and 15 <= s < 31:
            sc.addm(ws.pieces(2 + (s - 15) // 4), -1)
        if s == STPOS:
            sc.add(lambda: tstb.append(load_stats(k, ST_A[l], 8, VST, 4, 9)), -1)
    if wop is not None:
        for i in range(32):
            sc.add(lambda: wop.issue(1), 0)
    VCS = 11
    MF, RR = 40, 48
    VMEAN, VRSTD = 6, 7
    k(f"""
    v_lshlrev_b32 v{VCS}, 3, v2
    v_add_u32 v{VCS}, {L_CSQKV}, v{VCS}
    """)
    side = Kern("tmp")
    reduce_stats(side, VST, VMEAN, VRSTD, 8, 9)
    mean_frag(side, VMEAN, MF)
    side(f"""
    s_lshl_b32 s13, s3, 8
    s_add_u32 s13, s13, {L_STAT}
    v_lshl_add_u32 v8, v2, 2, s13
    v_lshl_add_u32 v9, v3, 4, s13
    ds_write_b32 v8, v{VRSTD}
    """)
    for q in range(4):
        side(f"ds_read_b128 v[{RR+4*q}:{RR+4*q+3}], v9 offset:{q*32}")
    side(f"v_mul_f32 v13, {fx(LOG2E)}, v{VRSTD}")
    PKF, VF = 112, 120
    T0 = 128
    ZP = 12
    KVA = 144
    sidetok = []

    def kv_epilogue():
        L = [lambda: k.wait_lg(sidetok[0])]
        for r in range(0, 16, 2):
            a, b, ta, tb = AK + r, AK + r + 1, T0, T0 + 1
            L += [f"v_mul_f32 v{a}, v{a}, v{RR+r}", f"v_mul_f32 v{b}, v{b}, v{RR+r+1}",
                  f"v_mul_f32 v{ta}, {fx(LOG2E)}, v{a}", f"v_mul_f32 v{tb}, {fx(LOG2E)}, v{b}",
                  f"v_min_f32 v{ta}, 0, v{ta}", f"v_min_f32 v{tb}, 0, v{tb}",
                  f"v_exp_f32 v{ta}, v{ta}", f"v_exp_f32 v{tb}, v{tb}",
                  f"v_max_f32 v{a}, 0, v{a}", f"v_max_f32 v{b}, 0, v{b}",
                  f"v_add_f32 v{ta}, {fx(1e-6)}, v{ta}", f"v_add_f32 v{tb}, {fx(1e-6)}, v{tb}",
                  f"v_add_f32 v{a}, v{a}, v{ta}", f"v_add_f32 v{b}, v{b}, v{tb}",
                  f"v_cvt_pk_bf16_f32 v{PKF+r//2}, v{a}, v{b}"]
            a, b = AV + r, AV + r + 1
            L += [f"v_mul_f32 v{a}, v{a}, v{RR+r}", f"v_mul_f32 v{b}, v{b}, v{RR+r+1}",
                  f"v_cvt_pk_bf16_f32 v{VF+r//2}, v{a}, v{b}"]
        sc.addm(L)

    def stage_sync(st):
        if st == 0:
            k.wait_vm(xl.tok[0])
        while st not in ws.tok:
            sc.popmem()
        k.wait_vm(ws.tok[st])
        if standalone or st == 0:
            k("s_barrier")
        if st in (0, 4):
            stamp(k, {0: 2, 4: 3}[st])

    items = []
    for s in range(32):
        items += [("w", 2 * s, (AK, s)), ("w", 2 * s + 1, (AV, s))]
    items += [("c", 0, AK), ("c", 1, AV)]
    items += [("w", 64 + s, (AQ, s)) for s in range(32)] + [("c", 2, AQ)]

    def mfma_emit(j, it, w):
        if it[0] == "w":
            acc, s = it[2]
            x = f"a[{4*s}:{4*s+3}]"
            cin = "0" if s == 0 else f"v[{acc}:{acc+15}]"
            if acc != AQ:
                while s not in xl.tok:
                    sc.popmem()
                k.wait_vm(xl.tok[s])
                if FINE and acc == AK and s in (8, 16, 24, 31):
                    stamp(k, {8: 3, 16: 4, 24: 5, 31: 6}[s])
        else:
            acc = it[2]
            x = f"v[{MF}:{MF+3}]"
            cin = f"v[{acc}:{acc+15}]"
        if acc == AQ:
            k(f"v_mfma_f32_32x32x16_bf16 v[{acc}:{acc+15}], {w}, {x}, {cin}")
        else:
            k(f"v_mfma_f32_32x32x16_bf16 v[{acc}:{acc+15}], {x}, {w}, {cin}")

    def fill(j, it):
        if j == STUSE:
            sc.add(lambda: k.wait_vm(tstb[0]))
            for x in side.items:
                sc.add(x.text)
            sc.add(lambda: sidetok.append(k.lg_n))
        if j == 62:
            sc.flush((1,))
        if j == 67:
            kv_epilogue()

    xstat_loop(k, sc, items, stage_sync, mfma_emit, fill, 96, VCS)
    sc.flush((1,))
    stamp(k, 4)
    k(f"v_mfma_f32_32x32x16_bf16 v[{KVA}:{KVA+15}], v[{PKF}:{PKF+3}], v[{VF}:{VF+3}], 0")
    k(f"v_mfma_f32_32x32x16_bf16 v[{KVA}:{KVA+15}], v[{PKF+4}:{PKF+7}], v[{VF+4}:{VF+7}], v[{KVA}:{KVA+15}]")
    k(f"v_mov_b32 v{ZP}, 0")
    k(f"v_mov_b32 v{T0}, {hex(ONES)}")
    for d in range(8):
        k(f"v_dot2_f32_bf16 v{ZP}, v{PKF+d}, v{T0}, v{ZP}")
    k(f"""
    s_mul_i32 s13, s3, 2176
    s_add_u32 s13, s13, {L_KVP}
    v_and_b32 v8, 15, v0
    v_lshlrev_b32 v8, 5, v8
    v_lshl_add_u32 v8, v3, 4, v8
    v_add_u32 v8, s13, v8
    v_bfe_u32 v4, v0, 3, 2
    v_mul_u32_u24 v4, 544, v4
    v_bfe_u32 v9, v0, 2, 1
    v_lshl_add_u32 v4, v9, 4, v4
    v_and_b32 v9, 3, v0
    v_lshl_add_u32 v4, v9, 2, v4
    v_add_u32 v4, s13, v4
    """)
    xhalf_add(k, ZP, T0, T0 + 1)
    k(f"""
    s_mov_b32 exec_lo, 0x0000ffff
    s_mov_b32 exec_hi, 0x0000ffff
    ds_write_b128 v8, v[{KVA}:{KVA+3}]
    ds_write_b128 v8, v[{KVA+4}:{KVA+7}] offset:544
    s_mov_b32 exec_lo, 0xffff0000
    s_mov_b32 exec_hi, 0xffff0000
    ds_write_b128 v8, v[{KVA+8}:{KVA+11}] offset:1088
    ds_write_b128 v8, v[{KVA+12}:{KVA+15}] offset:1632
    s_mov_b64 exec, -1
    ds_write_b32 v4, v{ZP} offset:512
    """)
    QF = 136

    def q_epi(r0, r1):
        for r in range(r0, r1, 2):
            a, b, ta, tb = AQ + r, AQ + r + 1, T0, T0 + 1
            for t in (f"v_mul_f32 v{ta}, v{a}, v13", f"v_mul_f32 v{tb}, v{b}, v13",
                      f"v_mul_f32 v{a}, v{a}, v{VRSTD}", f"v_mul_f32 v{b}, v{b}, v{VRSTD}",
                      f"v_min_f32 v{ta}, 0, v{ta}", f"v_min_f32 v{tb}, 0, v{tb}",
                      f"v_exp_f32 v{ta}, v{ta}", f"v_exp_f32 v{tb}, v{tb}",
                      f"v_max_f32 v{a}, 0, v{a}", f"v_max_f32 v{b}, 0, v{b}",
                      f"v_add_f32 v{ta}, {fx(1e-6)}, v{ta}", f"v_add_f32 v{tb}, {fx(1e-6)}, v{tb}",
                      f"v_add_f32 v{a}, v{a}, v{ta}", f"v_add_f32 v{b}, v{b}, v{tb}",
                      f"v_cvt_pk_bf16_f32 v{QF+r//2}, v{a}, v{b}"):
                k(t)

    k(f"""
    s_lshl_b32 s13, s3, 8
    v_lshl_add_u32 v8, v0, 2, s13
    v_add_u32 v9, {L_KVP}, v8
    s_mul_i32 s14, s45, 2176
    s_add_u32 s14, s14, {KVB[l]}
    """)
    q_epi(0, 2)
    k.wait_lg0()
    k("s_barrier")
    for i in range(3):
        for w in range(4):
            k(f"ds_read_b32 v{16+4*i+w}, v9 offset:{w*2176+i*1024}")
    q_epi(2, 4)
    k.wait_lg0()
    for i in range(3):
        k(f"v_add_f32 v{16+4*i}, v{16+4*i}, v{17+4*i}")
        k(f"v_add_f32 v{18+4*i}, v{18+4*i}, v{19+4*i}")
    for i in range(3):
        k(f"v_add_f32 v{16+4*i}, v{16+4*i}, v{18+4*i}")
    k(f"buffer_atomic_add_f32 v16, v8, {SRD_WS}, s14 offen{SC}")
    k(f"buffer_atomic_add_f32 v20, v8, {SRD_WS}, s14 offen offset:1024{SC}")
    k(f"""
    s_cmp_eq_u32 s3, 0
    s_cselect_b32 exec_lo, -1, 1
    s_mov_b32 exec_hi, 0
    s_cselect_b32 s15, 0, 0x10000000
    s_add_u32 s14, s14, s15
    buffer_atomic_add_f32 v24, v8, {SRD_WS}, s14 offen offset:2048{SC}
    s_mov_b64 exec, -1
    s_lshl_b32 s13, s44, 2
    s_add_u32 s13, s13, s3
    s_lshl_b32 s13, s13, 15
    s_lshl_b32 s14, s45, 11
    s_add_u32 s13, s13, s14
    s_add_u32 s13, s13, {PQ[l]}
    """)
    stamp(k, 5)
    q_epi(4, 8)
    k(f"buffer_store_dwordx4 v[{QF}:{QF+3}], v1, {SRD_WS}, s13 offen{SC}")
    q_epi(8, 16)
    k(f"buffer_store_dwordx4 v[{QF+4}:{QF+7}], v1, {SRD_WS}, s13 offen offset:1024{SC}")
    stamp(k, 6)


STPOS = 15
STUSE = 40


def red_write(k, acc, i, va):
    L = [f"s_xor_b32 s4, s3, {i}", "s_mul_i32 s4, s4, 12288", f"s_add_u32 s4, s4, {L_RED + (i-1)*4096}",
         f"v_add_u32 v{va}, s4, v1"]
    L += [f"ds_write_b128 v{va}, v[{acc+4*q}:{acc+4*q+3}] offset:{q*1024}" for q in range(4)]
    return L


def red_addr(va):
    return ["s_mul_i32 s4, s3, 12288", f"s_add_u32 s4, s4, {L_RED}", f"v_add_u32 v{va}, s4, v1"]


def phase2_pre(k, l):
    RES = 176
    k(f"""
    s_lshl_b32 s6, s44, 2
    s_lshr_b32 s7, s45, 2
    s_add_u32 s6, s6, s7
    s_and_b32 s7, s45, 3
    s_lshl_b32 s11, s6, 15
    s_lshl_b32 s12, s7, 13
    s_add_u32 s11, s11, s12
    s_lshl_b32 s12, s3, 11
    s_add_u32 s11, s11, s12
    s_add_u32 s12, s11, {XA[l]}
    s_add_u32 s11, s11, {X1[l]}
    buffer_load_dwordx4 v[{RES}:{RES+3}], v1, {SRD_WS}, s12 offen{SC}
    """)
    tres = k(f"buffer_load_dwordx4 v[{RES+4}:{RES+7}], v1, {SRD_WS}, s12 offen offset:1024{SC}")
    k(f"""
    s_lshl_b32 s13, s7, 2
    s_add_u32 s13, s13, s3
    s_lshl_b32 s13, s13, 14
    s_lshl_b32 s14, s6, 8
    s_add_u32 s13, s13, s14
    s_add_u32 s13, s13, {ST_1[l]}
    v_min_u32 v7, 16, v2
    v_lshlrev_b32 v7, 5, v7
    v_lshl_add_u32 v7, v3, 4, v7
    s_mul_i32 s8, s3, {8*1088}
    s_add_u32 s8, s8, {KVB[l]}
    s_lshl_b32 s9, s6, 15
    s_lshl_b32 s10, s3, 13
    s_add_u32 s9, s9, s10
    s_add_u32 s9, s9, {PQ[l]}
    """)
    return tres


def phase2(k, l, wop, tres, side_mem, late_mem=(), wo_inline=False):
    k.comment(f"==== P2 layer {l}")
    KVR = 16
    PQR = 128
    ACC = [80, 96, 112, 128]
    D = [144, 160]
    RES = 176
    OF = [184 + 4 * i for i in range(8)]
    AF = [8, 12]
    tpq = {}
    sc = Sched(k)

    def ld(i):
        k(f"buffer_load_dwordx4 v[{KVR+8*i}:{KVR+8*i+3}], v7, {SRD_WS}, s8 offen offset:{(i%2)*1088}{SC}")
        k(f"buffer_load_dwordx4 v[{KVR+8*i+4}:{KVR+8*i+7}], v7, {SRD_WS}, s8 offen offset:{(i%2)*1088+544}{SC}")
        if i % 2 == 1:
            k("s_add_u32 s8, s8, 2176")
        tpq[i] = k(f"buffer_load_dwordx4 a[{PQR+4*i}:{PQR+4*i+3}], v1, {SRD_WS}, s9 offen offset:{(i%4)*1024}{SC}")
        if i % 4 == 3:
            k("s_add_u32 s9, s9, 4096")

    nld = [0]

    def ld_next():
        i = nld[0]
        if i >= 8:
            return
        nld[0] += 1
        ld(i)
        if wo_inline:
            wop.issue(4)

    for i in range(2 if wo_inline else 5):
        ld_next()
    sc.addm(side_mem, 0)

    def need(i):
        while nld[0] <= i:
            ld_next()
        k.wait_vm(tpq[i])
        ld_next()

    def attn_cvt(i):
        af = AF[i % 2]
        return [lambda: need(i)] + [f"v_cvt_pk_bf16_f32 v{af+d}, v{KVR+8*i+2*d}, v{KVR+8*i+2*d+1}" for d in range(4)]

    def attn_mfma(i):
        af, dd = AF[i % 2], D[i % 2]
        k(f"v_mfma_f32_32x32x16_bf16 v[{dd}:{dd+15}], v[{af}:{af+3}], a[{PQR+4*i}:{PQR+4*i+3}], 0")
        sc.mfma_issued()

    def attn_post(i):
        dd, of = D[i % 2], OF[i]
        L = [f"v_add_f32 v{dd+8}, {fx(1e-6)}, v{dd+8}", f"v_rcp_f32 v{dd+8}, v{dd+8}", "s_nop 0"]
        L += [f"v_mul_f32 v{dd+j}, v{dd+j}, v{dd+8}" for j in range(8)]
        L += [f"v_cvt_pk_bf16_f32 v{of+d}, v{dd+2*d}, v{dd+2*d+1}" for d in range(4)]
        return L

    def main_mfma(i, c):
        of = OF[i]
        while (i * 4 + c) not in wop.tok:
            sc.popmem()
        k.wait_vm(wop.tok[i * 4 + c])
        cin = "0" if i == 0 else f"v[{ACC[c]}:{ACC[c]+15}]"
        k(f"v_mfma_f32_32x32x16_bf16 v[{ACC[c]}:{ACC[c]+15}], {wo_reg(i*4+c)}, v[{of}:{of+3}], {cin}")
        sc.mfma_issued()

    sc.addm(attn_cvt(0)); sc.flush((1,)); attn_mfma(0)
    stamp(k, 2)
    sc.addm(attn_cvt(1)); sc.flush((1,)); attn_mfma(1)
    sc.addm(attn_cvt(2)); sc.flush((1,))
    sc.addm(attn_post(0)); sc.flush((1,))
    first = (1, 2, 3, 0) if wo_inline else (1, 2)
    for i in range(8):
        if i + 2 < 8:
            attn_mfma(i + 2)
        if i + 1 < 8:
            sc.addm(attn_post(i + 1))
        if i + 3 < 8:
            sc.addm(attn_cvt(i + 3))
        sc.run()
        for c in first:
            main_mfma(i, c)
            sc.run()
        sc.flush((1,))
    sc.addm(late_mem, 0)
    if not wo_inline:
        for n, c in enumerate((3, 0)):
            for i in range(8):
                main_mfma(i, c)
                if i == 1:
                    if n == 0:
                        sc.addm(red_write(k, ACC[1], 1, 4) + red_write(k, ACC[2], 2, 4))
                    else:
                        sc.addm(red_write(k, ACC[3], 3, 4) + red_addr(6))
                sc.run()
            sc.flush((1,))
    else:
        for c in (1, 2, 3):
            sc.addm(red_write(k, ACC[c], c, 4))
        sc.addm(red_addr(6))
    sc.flush()
    stamp(k, 3)
    k.wait_lg0()
    k("s_barrier")
    tmp = 16
    toks = {}
    for q in range(4):
        for j in range(3):
            r = tmp + j * 16 + 4 * q
            toks[(j, q)] = k(f"ds_read_b128 v[{r}:{r+3}], v6 offset:{j*4096+q*1024}")
    a = ACC[0]
    for q in range(4):
        k.wait_lg(toks[(1, q)])
        for i in range(0, 4, 2):
            r = 4 * q + i
            k(f"v_pk_add_f32 v[{tmp+r}:{tmp+r+1}], v[{tmp+r}:{tmp+r+1}], v[{tmp+16+r}:{tmp+17+r}]")
        k.wait_lg(toks[(2, q)])
        for i in range(0, 4, 2):
            r = 4 * q + i
            k(f"v_pk_add_f32 v[{a+r}:{a+r+1}], v[{a+r}:{a+r+1}], v[{tmp+32+r}:{tmp+33+r}]")
        for i in range(0, 4, 2):
            r = 4 * q + i
            k(f"v_pk_add_f32 v[{a+r}:{a+r+1}], v[{a+r}:{a+r+1}], v[{tmp+r}:{tmp+r+1}]")
    stamp(k, 4)
    k.wait_vm(tres)
    out_tile_epilogue(k, a, RES, 8, 11, 13, False)
    stamp(k, 5)


def phase3(k, l, ws, wdp, early=()):
    k.comment(f"==== P3 layer {l}")
    k("""
    s_lshl_b32 s8, s44, 2
    s_add_u32 s8, s8, s3
    """)
    VST = 16
    xl = XLoader(k, X1[l], 8)
    sc = Sched(k)
    XPRE = 11
    tstb = []
    for s in range(XPRE):
        xl.issue(s)
    for s in range(XPRE, 32):
        sc.add(lambda s=s: xl.issue(s), -1)
        if s == STPOS:
            sc.add(lambda: tstb.append(load_stats(k, ST_1[l], 8, VST, 4, 9)), -1)
    for st in early:
        sc.addm(ws.pieces(st), 0)
    ACC = [64 + 16 * t for t in range(7)]
    VCS = 9
    k(f"""
    v_lshlrev_b32 v{VCS}, 3, v2
    v_add_u32 v{VCS}, {L_CSGU}, v{VCS}
    s_mul_i32 s13, s8, {112*1024}
    s_mul_i32 s14, s45, {7*1024}
    s_add_u32 s13, s13, s14
    s_add_u32 s13, s13, {HB[l]}
    """)
    wdp.start()
    VMEAN, VRSTD = 6, 7
    MF = 40
    c0 = -2.0 * math.sqrt(2.0 / math.pi) * LOG2E
    C1, C3, IR2 = 10, 11, 12
    side = Kern("tmp")
    reduce_stats(side, VST, VMEAN, VRSTD, 8, 4)
    mean_frag(side, VMEAN, MF)
    side(f"""
    v_mul_f32 v{C1}, {fx(c0)}, v{VRSTD}
    v_mul_f32 v13, v{VRSTD}, v{VRSTD}
    v_mul_f32 v{C3}, {fx(0.044715)}, v13
    v_mul_f32 v{C3}, v{C3}, v{C1}
    v_rcp_f32 v{IR2}, v13
    """)
    T0 = 16
    HP = 32

    def epilogue(t):
        a = ACC[t]
        hp = HP + 4 * (t % 2)
        for j in range(0, 8, 2):
            x0, x1, t0, t1 = a + j, a + j + 1, T0, T0 + 1
            sc.addm([f"v_mul_f32 v{t0}, v{x0}, v{x0}", f"v_mul_f32 v{t1}, v{x1}, v{x1}",
                     f"v_fma_f32 v{t0}, v{t0}, v{C3}, v{C1}", f"v_fma_f32 v{t1}, v{t1}, v{C3}, v{C1}",
                     f"v_mul_f32 v{t0}, v{t0}, v{x0}", f"v_mul_f32 v{t1}, v{t1}, v{x1}",
                     f"v_exp_f32 v{t0}, v{t0}", f"v_exp_f32 v{t1}, v{t1}",
                     f"v_mul_f32 v{x0}, v{x0}, v{x0+8}", f"v_mul_f32 v{x1}, v{x1}, v{x1+8}",
                     f"v_fma_f32 v{t0}, v{t0}, v{IR2}, v{IR2}", f"v_fma_f32 v{t1}, v{t1}, v{IR2}, v{IR2}",
                     f"v_rcp_f32 v{t0}, v{t0}", f"v_rcp_f32 v{t1}, v{t1}",
                     f"v_mul_f32 v{x0}, v{x0}, v{t0}", f"v_mul_f32 v{x1}, v{x1}, v{t1}",
                     f"v_cvt_pk_bf16_f32 v{hp+j//2}, v{x0}, v{x1}"])
        off = (t % 4) * 1024
        if t == 4:
            sc.add("s_add_u32 s13, s13, 4096")
        sc.add(f"buffer_store_dwordx4 v[{hp}:{hp+3}], v1, {SRD_WS}, s13 offen offset:{off}{SC}")

    def stage_sync(st):
        if st == 0:
            k.wait_vm(xl.tok[0])
        while st not in ws.tok:
            sc.popmem()
        k.wait_vm(ws.tok[st])
        if st == 0 or st >= 2:
            k("s_barrier")
        if st in (0, 4, 8):
            stamp(k, {0: 2, 4: 3, 8: 4}[st])
        if 2 <= st < 8:
            sc.addm(ws.pieces(st + 6), 0)

    items = []
    for s in range(32):
        items += [("w", NFIRST * s + t, (t, s)) for t in range(NFIRST)]
    items += [("c", t, t) for t in range(NFIRST)]
    for t in range(NFIRST, 7):
        items += [("w", 32 * t + s, (t, s)) for s in range(32)] + [("c", t, t)]
    NF = NFIRST * 32
    pend = []

    def mfma_emit(j, it, w):
        if it[0] == "w":
            t, s = it[2]
            if j < NF:
                while s not in xl.tok:
                    sc.popmem()
                k.wait_vm(xl.tok[s])
                if FINE and t == 0 and s in (8, 16, 24, 31):
                    stamp(k, {8: 3, 16: 4, 24: 5, 31: 6}[s])
            cin = "0" if s == 0 else f"v[{ACC[t]}:{ACC[t]+15}]"
            x = f"a[{4*s}:{4*s+3}]"
        else:
            t = it[2]
            cin = f"v[{ACC[t]}:{ACC[t]+15}]"
            x = f"v[{MF}:{MF+3}]"
            pend.append((j + 4, t))
        k(f"v_mfma_f32_32x32x16_bf16 v[{ACC[t]}:{ACC[t]+15}], {w}, {x}, {cin}")

    def fill(j, it):
        if j == STUSE:
            sc.add(lambda: k.wait_vm(tstb[0]))
            for x in side.items:
                sc.add(x.text)
        if j == NF - 2:
            sc.flush((1,))
        while pend and pend[0][0] <= j:
            epilogue(pend.pop(0)[1])
        if j >= WD_START and not sc.q[0] and not sc.q[-1] and wdp.next < 44:
            sc.add(lambda: wdp.issue(1, 44), 0)

    xstat_loop(k, sc, items, stage_sync, mfma_emit, fill, 128, VCS)
    sc.flush()
    stamp(k, 5)
    while pend:
        epilogue(pend.pop(0)[1])
    sc.flush()
    stamp(k, 6)


WD_START = 40


def phase4_pre(k, l, final):
    RES = 80
    k(f"""
    s_lshl_b32 s6, s44, 1
    s_lshr_b32 s7, s45, 3
    s_add_u32 s6, s6, s7
    s_and_b32 s7, s45, 7
    s_lshr_b32 s11, s3, 1
    s_lshl_b32 s12, s6, 1
    s_add_u32 s11, s11, s12
    s_and_b32 s12, s3, 1
    s_lshl_b32 s13, s7, 1
    s_add_u32 s12, s12, s13
    s_lshl_b32 s13, s11, 15
    s_lshl_b32 s14, s12, 11
    s_add_u32 s13, s13, s14
    s_add_u32 s14, s13, {X1[l]}
    buffer_load_dwordx4 v[{RES}:{RES+3}], v1, {SRD_WS}, s14 offen{SC}
    """)
    tres = k(f"buffer_load_dwordx4 v[{RES+4}:{RES+7}], v1, {SRD_WS}, s14 offen offset:1024{SC}")
    k(f"""
    s_mul_i32 s10, s3, {28*1024}
    s_add_u32 s10, s10, {HB[l]}
    s_mul_i32 s8, s11, {112*1024}
    s_add_u32 s8, s8, s10
    s_xor_b32 s9, s11, 1
    s_mul_i32 s9, s9, {112*1024}
    s_add_u32 s9, s9, s10
    s_cmp_eq_u32 s7, 7
    s_cselect_b32 s10, 0, s7
    s_lshl_b32 s10, s10, {12 if ROT else 31}
    s_and_b32 s10, s10, 0xffff
    s_add_u32 s6, s9, s10
    """)
    if not final:
        k(f"""
        s_add_u32 s13, s13, {XA[l+1]}
        s_lshl_b32 s14, s12, 14
        s_lshl_b32 s15, s11, 8
        s_add_u32 s14, s14, s15
        s_add_u32 s14, s14, {ST_A[l+1]}
        """)
    else:
        k(f"""
        s_lshl_b32 s13, s11, 15
        s_lshl_b32 s14, s12, 6
        s_add_u32 s13, s13, s14
        v_lshlrev_b32 v6, 10, v2
        v_lshl_add_u32 v6, v3, 4, v6
        """)
    return tres


def phase4(k, l, final, wdp, tres, tail_mem):
    k.comment(f"==== P4 layer {l}")
    ACC = [16, 32, 48, 64]
    RES = 80
    TMP = 112
    tok = {}
    sc = Sched(k)

    def issue(n):
        r = (n % 32) * 4
        tok[n] = k(f"buffer_load_dwordx4 a[{r}:{r+3}], v1, {SRD_WS}, s6 offen offset:{(n%4)*1024}{SC}")
        if n % 4 == 3 and n < 55:
            base = 9 if n + 1 < 28 else 8
            k(f"""
            s_add_u32 s10, s10, 4096
            s_cmp_eq_u32 s10, {7*4096}
            s_cselect_b32 s10, 0, s10
            s_add_u32 s6, s{base}, s10
            """)

    AH = 12
    for n in range(AH):
        issue(n)
    seq = []
    for n in range(28):
        seq += [(n, 2), (n, 3)]
    LT = 4
    for n in range(28, 56 - LT):
        seq += [(n, 1), (n, 0)]
    seq += [(n, 1) for n in range(56 - LT, 56)] + [(n, 0) for n in range(56 - LT, 56)]
    rtok = []
    issued = AH
    for j, (n, ai) in enumerate(seq):
        i = n % 28
        c = ai & 1
        k.wait_vm(tok[n])
        k.wait_vm(wdp.tok[2 * i + c])
        if j in (0, 56):
            stamp(k, 2 if j == 0 else 3)
        a = ACC[ai]
        r = (n % 32) * 4
        cin = "0" if i == 0 else f"v[{a}:{a+15}]"
        k(f"v_mfma_f32_32x32x16_bf16 v[{a}:{a+15}], {wd_reg(2*i+c)}, a[{r}:{r+3}], {cin}")
        sc.mfma_issued()
        if j % 2 == 0 and issued < 56:
            issue(issued)
            issued += 1
        if j == 58:
            sc.addm(red_write(k, ACC[2], 2, 4) + red_write(k, ACC[3], 3, 4) + red_addr(5 + 2))
        if j == 80:
            sc.flush((1,))
            k.wait_lg0()
            k("s_barrier")
            for jj in (1, 2):
                for q in range(4):
                    rr = TMP + jj * 16 + 4 * q
                    sc.add(lambda jj=jj, q=q, rr=rr: rtok.append(k(f"ds_read_b128 v[{rr}:{rr+3}], v7 offset:{jj*4096+q*1024}")))
            sc.add(lambda: k.wait_lg(rtok[-1]))
            sc.addm([f"v_add_f32 v{TMP+16+r_}, v{TMP+16+r_}, v{TMP+32+r_}" for r_ in range(16)])
            sc.addm(tail_mem, 0)
        if j == 112 - LT + 1:
            sc.flush((1,))
            sc.addm(red_write(k, ACC[1], 1, 4))
        sc.run()
    sc.flush()
    stamp(k, 4)
    k.wait_lg0()
    k("s_barrier")
    toks = [k(f"ds_read_b128 v[{TMP+4*q}:{TMP+4*q+3}], v7 offset:{q*1024}") for q in range(4)]
    a = ACC[0]
    for r in range(0, 16, 2):
        k(f"v_pk_add_f32 v[{a+r}:{a+r+1}], v[{a+r}:{a+r+1}], v[{TMP+16+r}:{TMP+17+r}]")
    for q in range(4):
        k.wait_lg(toks[q])
        for r in (4 * q, 4 * q + 2):
            k(f"v_pk_add_f32 v[{a+r}:{a+r+1}], v[{a+r}:{a+r+1}], v[{TMP+r}:{TMP+r+1}]")
    stamp(k, 5)
    k.wait_vm(tres)
    out_tile_epilogue(k, a, RES, 8, 13, 14, final, 6, "s[40:43]")
    stamp(k, 6)


def gen_k1():
    k = Kern("k1_kernel")
    prologue(k, 256, "k1_done")
    common_setup(k)
    fin = cs_prep(k, False, True, 200)
    ws = WStream(k, 48, 8)
    ws.start(P_QKV, 96 * 1024)
    phase1(k, 0, ws, None, standalone=True, cs_fin=fin)
    if STAMP:
        k.wait_vm0()
        stamp(k, 8)
        stamp(k, 9, True)
        stamp_flush(k, 0)
    k.label("k1_done")
    k("s_endpgm")
    return k, (256, 256, LDS_TOTAL)


def gen_mega():
    k = Kern("mega_kernel")
    prologue(k, 256, "mega_done")
    common_setup(k)
    srd(k, 40, 30, 2048 * 512 * 2)
    wop = WoPref(k)
    wdp = WdPref(k)
    wg = WStream(k, 48, 8)
    wq = WStream(k, 49, 8)
    wg.start(P_GU, 224 * 1024)
    wq.start(P_QKV, 96 * 1024)
    pid = [1]

    def end_phase():
        stamp(k, 7)

    def new_phase():
        stamp(k, 8)
        stamp(k, 9, True)
        stamp_flush(k, pid[0])
        pid[0] += 1
        stamp(k, 0, True)
        stamp(k, 1)

    for l in range(2):
        final = l == 1
        if l == 0:
            tres = phase2_pre(k, 0)
            wop.start()
            fins = []
            late = [lambda: fins.append(cs_prep(k, True, True, 64))]
            for st in range(2):
                late += wg.pieces(st)
            phase2(k, 0, wop, tres, [], late, wo_inline=True)
            fins[0]()
            k.wait_lg0()
        else:
            side = []
            for st in range(2, 6):
                side += wg.pieces(st)
            phase2(k, 1, wop, tres, side)
        signal(k, 3 * l + 0)
        end_phase()
        if NOPF:
            wait_sync(k, 3 * l + 0, False)
            new_phase()
            k.wait_vm0()
        if l == 0:
            wg.issue_by_stage(2, 3)
        else:
            wg.issue_by_stage(6, 2)
        if not NOPF:
            wait_sync(k, 3 * l + 0, False)
            new_phase()
        phase3(k, l, wg, wdp, early=(5, 6, 7) if l == 0 else ())
        signal(k, 3 * l + 1)
        end_phase()
        tail = []
        if not final:
            for st in range(3, 6):
                tail += wq.pieces(st)
        tres = phase4_pre(k, l, final)
        if not NOPF:
            wdp.issue(56)
        wait_sync(k, 3 * l + 1, False)
        new_phase()
        wdp.issue(56)
        phase4(k, l, final, wdp, tres, tail)
        if final:
            break
        signal(k, 2)
        end_phase()
        if NOPF:
            wait_sync(k, 2, False)
            new_phase()
            k.wait_vm0()
        wq.issue_by_stage(0, 3)
        wop.start()
        if not NOPF:
            wait_sync(k, 2, False)
            new_phase()
        phase1(k, 1, wq, wop)
        signal(k, 5, glob=True)
        end_phase()
        wg.tok = {}
        if NOPF:
            wait_sync(k, 6, False)
            new_phase()
            k.wait_vm0()
        wg.issue_by_stage(0, 2)
        wop.issue(32)
        tres = phase2_pre(k, 1)
        if not NOPF:
            wait_sync(k, 6, False)
            new_phase()
    if STAMP:
        k.wait_vm0()
        end_phase()
        new_phase()
    k.label("mega_done")
    k("s_endpgm")
    return k, (256, 256, LDS_TOTAL)


HEADER = """; Kernarg layout for this problem (80 bytes, ptrs only, base s[0:1]):
"""


def build(out=None):
    ks = [gen_k0(), gen_k1(), gen_mega()]
    s = HEADER
    for kk, (g, b, l) in ks:
        s += f"; @launch kernel={kk.name} grid=({g},1,1) block=({b},1,1) lds={l}\n"
    s += '.amdgcn_target "amdgcn-amd-amdhsa--gfx950"\n.text\n'
    descs = ""
    for kk, _ in ks:
        t, d = kk.full_text()
        s += t
        descs += d
        print(f"{kk.name}: {sum(1 for i in kk.items if not isinstance(i,str))} instrs, pads {kk.npad}, v{kk.maxv+1} a{kk.maxa+1} s{kk.maxs+1}", file=sys.stderr)
    s += '.section .rodata,"a"\n' + descs
    out = out or f"cdna_kernels/{NAME}.s"
    open(out, "w").write(s)


if __name__ == "__main__":
    if len(sys.argv) > 1 and sys.argv[1] == "stamp":
        STAMP = True
        build(out=sys.argv[2] if len(sys.argv) > 2 else "stamp.s")
    else:
        build(out=sys.argv[1] if len(sys.argv) > 1 else None)
```

```python
import sys, struct, math, os
sys.path.insert(0, "dev")
from asmlib import Kern, Ins

NAME = "interleave_layers__linear_attn_block__glu_gated_geglu__prompt"

P_QKV = 0x000000
P_WO = 0x180000
P_GU = 0x200000
P_WD = 0x580000
CS_QKV = 0x740000
CS_GU = 0x750000
CS_DUMMY = 0x20000000
CNT = 0x778000
KVB = [0x780000, 0x790000]
ST_A = [0x800000, 0x840000]
ST_1 = [0x880000, 0x8C0000]
XA = [0x900000, 0xB00000]
X1 = [0xD00000, 0xF00000]
PQ = [0x1100000, 0x1300000]
HB = [0x1500000, 0x1C00000]
STAMPBUF = 0x2300000
WS_USED = 0x2800000

ONES = 0x3F803F80
LOG2E = 1.4426950408889634
NFIRST = 2

L_RED = 96 * 1024
L_MISC = 144 * 1024
L_CSGU = L_MISC
L_CSQKV = L_MISC + 2048
L_STAT = L_MISC + 3072
L_KVP = L_MISC + 4096
LDS_TOTAL = 160 * 1024

STAMP = False
MAPB = int(os.environ.get('MAPB', '1'))
SRD_WS = "s[36:39]"
SC = " sc1"


def f2u(x):
    return struct.unpack("<I", struct.pack("<f", x))[0]


def fx(x):
    return "0x%08x" % f2u(x)


NOPF = bool(os.environ.get('NOPF'))
ROT = int(os.environ.get('ROT', '1'))
FAKEW = bool(os.environ.get('FAKEW'))
FINE = bool(os.environ.get('FINE'))
_fine_phase = [False]


def stamp(k, i, real=False, fine=None):
    import inspect
    if FINE and 3 <= i <= 6:
        caller = inspect.stack()[1].function
        outer = [f.function for f in inspect.stack()]
        if ('phase1' in outer or 'phase3' in outer) and caller != 'mfma_emit':
            return
    if STAMP:
        k(f"s_memrealtime s[{82+2*i}:{83+2*i}]" if real else f"s_memtime s[{82+2*i}:{83+2*i}]")


def stamp_flush(k, pid):
    if not STAMP:
        return
    k.wait_lg0()
    k("s_mov_b64 exec, 1")
    for i in range(10):
        k(f"v_mov_b32 v{16+i}, s{82+2*i}")
    k(f"""
    s_lshl_b32 s4, s2, 2
    s_add_u32 s4, s4, s3
    s_lshl_b32 s4, s4, 6
    s_add_u32 s4, s4, {STAMPBUF + pid*0x10000}
    v_mov_b32 v26, 0
    buffer_store_dwordx4 v[16:19], v26, {SRD_WS}, s4 offen
    buffer_store_dwordx4 v[20:23], v26, {SRD_WS}, s4 offen offset:16
    buffer_store_dwordx2 v[24:25], v26, {SRD_WS}, s4 offen offset:32
    s_mov_b64 exec, -1
    s_nop 1
    """)
    for i in range(10):
        k(f"s_mov_b32 s{82+2*i}, 0")


def prologue(k, nwg, done):
    if STAMP:
        for i in range(10):
            k(f"s_mov_b32 s{82+2*i}, 0")
    stamp(k, 0, True)
    stamp(k, 1)
    k(f"""
    s_cmp_ge_u32 s2, {nwg}
    s_cbranch_scc1 {done}
    s_load_dwordx16 s[16:31], s[0:1], 0
    s_load_dwordx4 s[32:35], s[0:1], 64
    """)


def build_ws_srd(k):
    k(f"""
    s_waitcnt lgkmcnt(0)
    s_mov_b32 s36, s34
    s_mov_b32 s37, s35
    s_mov_b32 s38, {WS_USED}
    s_mov_b32 s39, 0x20000
    """)


def srd(k, d, base, nbytes):
    k(f"""
    s_mov_b32 s{d}, s{base}
    s_mov_b32 s{d+1}, s{base+1}
    s_mov_b32 s{d+2}, {nbytes}
    s_mov_b32 s{d+3}, 0x20000
    """)


def xhalf_add(k, v, ta, tb):
    k(f"v_mov_b32 v{ta}, v{v}")
    k(f"v_mov_b32 v{tb}, v{v}")
    k(f"v_permlane32_swap_b32 v{ta}, v{tb}")
    k(f"v_add_f32 v{v}, v{ta}, v{tb}")


def gen_k0():
    k = Kern("k0_kernel")
    NJ = 592
    prologue(k, NJ, "k0_done")
    build_ws_srd(k)
    k("""
    s_cmp_ge_u32 s2, 464
    s_cbranch_scc1 k0_x
    s_cmp_ge_u32 s2, 352
    s_cbranch_scc1 k0_wd
    s_cmp_ge_u32 s2, 320
    s_cbranch_scc1 k0_wo
    s_cmp_ge_u32 s2, 224
    s_cbranch_scc1 k0_qkv
    """)
    srd(k, 40, 24, 512 * 1792 * 2)
    srd(k, 44, 26, 512 * 1792 * 2)
    k(f"""
    s_lshr_b32 s70, s2, 3
    s_and_b32 s71, s2, 7
    s_mov_b32 s60, 3584
    s_mul_i32 s61, s71, {64*3584}
    s_lshl_b32 s72, s70, 7
    s_add_u32 s61, s61, s72
    s_mov_b32 s62, s61
    s_mov_b32 s63, 8192
    s_mov_b32 s64, 0
    s_mov_b32 s65, 32
    s_mov_b32 s66, 64
    s_mov_b32 s67, 96
    """)
    for q in range(4):
        k(f"""
        s_lshl_b32 s72, s70, 2
        s_add_u32 s72, s72, {q}
        s_mul_i32 s73, s72, 9363
        s_lshr_b32 s73, s73, 16
        s_mul_i32 s74, s73, 7
        s_sub_u32 s74, s72, s74
        s_sub_u32 s78, s71, s73
        s_and_b32 s78, s78, {7 if ROT else 0}
        s_cselect_b32 s78, s78, s78
        {"" if ROT else "s_mov_b32 s78, s71"}
        s_mul_i32 s75, s78, {4*NFIRST}
        s_add_u32 s75, s75, s74
        s_lshl_b32 s76, s74, 5
        s_lshl_b32 s77, s78, 2
        s_add_u32 s76, s76, s77
        s_cmp_lt_u32 s74, {NFIRST}
        s_cselect_b32 s75, s75, s76
        s_cselect_b32 s{52+q}, {NFIRST}, 1
        s_lshl_b32 s{52+q}, s{52+q}, 10
        s_lshl_b32 s75, s75, 10
        s_mul_i32 s73, s73, {224*1024}
        s_add_u32 s75, s75, s73
        s_add_u32 s{48+q}, s75, {P_GU}
        s_mul_i32 s75, s71, {3584*4}
        s_lshl_b32 s72, s72, 7
        s_add_u32 s75, s75, s72
        s_add_u32 s{56+q}, s75, {CS_GU}
        """)
    k("s_branch k0_pack")
    k.label("k0_qkv")
    srd(k, 40, 18, 512 * 1536 * 2)
    srd(k, 44, 18, 512 * 1536 * 2)
    k(f"""
    s_sub_u32 s69, s2, 224
    s_lshr_b32 s70, s69, 3
    s_and_b32 s71, s69, 7
    s_mov_b32 s60, 3072
    s_mul_i32 s61, s71, {64*3072}
    s_lshl_b32 s72, s70, 8
    s_add_u32 s61, s61, s72
    s_add_u32 s62, s61, 128
    s_lshr_b32 s73, s70, 2
    s_and_b32 s74, s70, 3
    s_sub_u32 s78, s73, 1
    s_lshl_b32 s78, s78, 7
    s_sub_u32 s81, s73, 1
    s_cmp_eq_u32 s73, 0
    s_cselect_b32 s77, 1, 2
    s_cselect_b32 s78, 256, s78
    s_cselect_b32 s81, 64, s81
    s_mul_i32 s79, s71, 6144
    s_add_u32 s78, s78, s79
    """)
    for q in range(4):
        k(f"""
        s_lshl_b32 s72, s74, 2
        s_add_u32 s72, s72, {q}
        s_sub_u32 s75, s71, s72
        s_and_b32 s75, s75, 7
        {"" if ROT else "s_mov_b32 s75, s71"}
        s_lshl_b32 s75, s75, 2
        s_mul_i32 s75, s75, s77
        s_add_u32 s75, s75, s81
        s_lshl_b32 s75, s75, 10
        s_mul_i32 s76, s72, {96*1024}
        s_add_u32 s76, s76, s75
        s_add_u32 s{48+q}, s76, {P_QKV}
        s_lshl_b32 s{52+q}, s77, 10
        s_mul_i32 s76, s72, 384
        s_add_u32 s76, s76, s78
        s_add_u32 s{56+q}, s76, {CS_QKV}
        """)
    k("s_branch k0_plain")
    k.label("k0_wo")
    srd(k, 40, 20, 512 * 512 * 2)
    srd(k, 44, 20, 512 * 512 * 2)
    k(f"""
    s_sub_u32 s69, s2, 320
    s_lshr_b32 s70, s69, 3
    s_and_b32 s71, s69, 7
    s_mov_b32 s60, 1024
    s_lshl_b32 s61, s71, 16
    s_lshl_b32 s72, s70, 8
    s_add_u32 s61, s61, s72
    s_add_u32 s62, s61, 128
    s_lshl_b32 s75, s70, 17
    s_lshl_b32 s76, s71, 14
    s_add_u32 s75, s75, s76
    """)
    for q in range(4):
        k(f"""
        s_add_u32 s{48+q}, s75, {P_WO + q*1024}
        s_mov_b32 s{52+q}, 4096
        s_mov_b32 s{56+q}, {CS_DUMMY}
        """)
    k("s_branch k0_plain")
    k.label("k0_wd")
    srd(k, 40, 28, 1792 * 512 * 2)
    srd(k, 44, 28, 1792 * 512 * 2)
    k(f"""
    s_sub_u32 s69, s2, 352
    s_and_b32 s70, s69, 3
    s_lshr_b32 s71, s69, 2
    s_mov_b32 s60, 1024
    s_lshl_b32 s61, s71, 16
    s_lshl_b32 s72, s70, 8
    s_add_u32 s61, s61, s72
    s_add_u32 s62, s61, 128
    s_mul_i32 s73, s71, 9363
    s_lshr_b32 s73, s73, 16
    s_mul_i32 s74, s73, 7
    s_sub_u32 s76, s71, s74
    """)
    for q in range(4):
        k(f"""
        s_lshl_b32 s77, s70, 1
        s_add_u32 s77, s77, {q>>1}
        s_cmp_eq_u32 s77, 7
        s_cselect_b32 s78, 0, s77
        {"" if ROT else "s_mov_b32 s78, 0"}
        s_sub_i32 s78, s76, s78
        s_add_i32 s79, s78, 7
        s_cmp_lt_i32 s78, 0
        s_cselect_b32 s78, s79, s78
        s_add_u32 s78, s78, s74
        s_lshl_b32 s78, s78, 13
        s_mul_i32 s77, s77, {224*1024}
        s_add_u32 s78, s78, s77
        s_add_u32 s{48+q}, s78, {P_WD + (q&1)*1024}
        s_mov_b32 s{52+q}, 2048
        s_mov_b32 s{56+q}, {CS_DUMMY}
        """)
    k.label("k0_plain")
    k("""
    s_mov_b32 s63, 32
    s_mov_b32 s64, 0
    s_mov_b32 s65, 64
    s_mov_b32 s66, 8192
    s_mov_b32 s67, 8256
    """)
    k.label("k0_pack")
    k(f"""
    v_lshrrev_b32 v1, 3, v0
    v_mul_lo_u32 v1, v1, s60
    v_and_b32 v8, 7, v0
    v_lshl_add_u32 v1, v8, 4, v1
    s_lshl_b32 s68, s60, 3
    """)
    for part in range(2):
        so = 61 + part
        sr = "s[40:43]" if part == 0 else "s[44:47]"
        for g in range(8):
            k(f"s_mov_b32 m0, {part*8192 + g*1024}")
            k(f"buffer_load_dwordx4 v1, {sr}, s{so} offen lds")
            if g < 7:
                k(f"s_add_u32 s{so}, s{so}, s68")
    k(f"""
    v_bfe_u32 v8, v0, 4, 1
    v_mul_lo_u32 v8, v8, s63
    v_lshrrev_b32 v9, 5, v0
    v_lshlrev_b32 v9, 2, v9
    v_bfe_u32 v10, v0, 2, 2
    v_add_u32 v9, v9, v10
    v_lshl_add_u32 v8, v9, 7, v8
    v_and_b32 v10, 3, v0
    v_lshl_add_u32 v8, v10, 3, v8
    v_add_u32 v2, s64, v8
    v_add_u32 v3, s65, v8
    v_add_u32 v4, s66, v8
    v_add_u32 v5, s67, v8
    v_lshlrev_b32 v6, 4, v0
    v_and_b32 v7, 31, v0
    v_lshlrev_b32 v7, 2, v7
    v_mov_b32 v11, {hex(ONES)}
    v_mov_b32 v12, 0
    v_mov_b32 v13, 0
    v_mov_b32 v14, 0
    v_mov_b32 v15, 0
    """)
    k.wait_vm0()
    toks = {}
    for q in range(4):
        for u in range(4):
            r = 16 + (q * 4 + u) * 4
            k(f"ds_read_b64_tr_b16 v[{r}:{r+1}], v{2+q} offset:{(16*u)*128}")
            toks[(q, u)] = k(f"ds_read_b64_tr_b16 v[{r+2}:{r+3}], v{2+q} offset:{(16*u+8)*128}")
        for u in range(4):
            r = 16 + (q * 4 + u) * 4
            k.wait_lg(toks[(q, u)])
            k(f"buffer_store_dwordx4 v[{r}:{r+3}], v6, {SRD_WS}, s{48+q} offen")
            if u < 3:
                k(f"s_add_u32 s{48+q}, s{48+q}, s{52+q}")
            for d in range(4):
                k(f"v_dot2_f32_bf16 v{12+q}, v{r+d}, v11, v{12+q}")
    for q in range(4):
        xhalf_add(k, 12 + q, 8, 9)
        k(f"buffer_store_dword v{12+q}, v7, {SRD_WS}, s{56+q} offen")
    k("s_endpgm")
    k.label("k0_x")
    srd(k, 40, 16, 2048 * 512 * 2)
    k(f"""
    s_sub_u32 s69, s2, 464
    s_lshr_b32 s70, s69, 1
    s_and_b32 s71, s69, 1
    s_lshl_b32 s61, s70, 15
    s_lshl_b32 s72, s71, 9
    s_add_u32 s61, s61, s72
    v_and_b32 v1, 31, v0
    v_lshlrev_b32 v7, 3, v1
    v_lshlrev_b32 v1, 10, v1
    v_lshrrev_b32 v8, 5, v0
    v_lshl_add_u32 v1, v8, 4, v1
    v_lshlrev_b32 v6, 4, v0
    v_mov_b32 v11, {hex(ONES)}
    """)
    lt = []
    for c in range(16):
        r = 16 + c * 4
        lt.append(k(f"buffer_load_dwordx4 v[{r}:{r+3}], v1, s[40:43], s61 offen offset:{c*32}"))
    k(f"""
    s_mul_i32 s73, s69, 272
    s_add_u32 s74, s73, {KVB[1]}
    s_add_u32 s73, s73, {KVB[0]}
    s_lshl_b32 s75, s69, 8
    s_add_u32 s75, s75, {CNT}
    v_mov_b32 v80, 0
    v_mov_b32 v81, 0
    v_mov_b32 v82, 0
    v_mov_b32 v83, 0
    s_mov_b64 exec, 0x1ffff
    buffer_store_dwordx4 v[80:83], v6, {SRD_WS}, s73 offen
    buffer_store_dwordx4 v[80:83], v6, {SRD_WS}, s74 offen
    s_mov_b64 exec, 0xffff
    buffer_store_dwordx4 v[80:83], v6, {SRD_WS}, s75 offen
    s_mov_b64 exec, -1
    s_lshl_b32 s62, s70, 15
    s_lshl_b32 s72, s71, 14
    s_add_u32 s62, s62, s72
    s_add_u32 s62, s62, {XA[0]}
    s_lshl_b32 s63, s71, 17
    s_lshl_b32 s72, s70, 8
    s_add_u32 s63, s63, s72
    s_add_u32 s63, s63, {ST_A[0]}
    """)
    for p in range(8):
        k("v_mov_b32 v12, 0")
        k("v_mov_b32 v13, 0")
        for c in (2 * p, 2 * p + 1):
            r = 16 + c * 4
            k.wait_vm(lt[c])
            k(f"v_permlane32_swap_b32 v{r}, v{r+2}")
            k(f"v_permlane32_swap_b32 v{r+1}, v{r+3}")
            k(f"buffer_store_dwordx4 v[{r}:{r+3}], v6, {SRD_WS}, s62 offen offset:{(c%4)*1024}")
            if c % 4 == 3:
                k("s_add_u32 s62, s62, 4096")
            for d in range(4):
                k(f"v_dot2_f32_bf16 v12, v{r+d}, v11, v12")
                k(f"v_dot2_f32_bf16 v13, v{r+d}, v{r+d}, v13")
        xhalf_add(k, 12, 8, 9)
        xhalf_add(k, 13, 8, 9)
        k(f"buffer_store_dwordx2 v[12:13], v7, {SRD_WS}, s63 offen")
        k("s_add_u32 s63, s63, 16384")
        k("s_nop 1")
    k.label("k0_done")
    k("s_endpgm")
    return k, (NJ, 64, 16384)


def common_setup(k, early=None):
    k("""
    v_lshrrev_b32 v3, 6, v0
    v_and_b32 v0, 63, v0
    v_readfirstlane_b32 s3, v3
    v_lshlrev_b32 v1, 4, v0
    v_and_b32 v2, 31, v0
    v_lshrrev_b32 v3, 5, v0
    v_add_u32 v5, 0x10000, v1
    s_lshl_b32 s50, s3, 12
    s_mov_b32 s52, -1
    s_mov_b32 s53, 0
    s_and_b32 s4, s2, 7
    s_lshr_b32 s5, s2, 3
    """)
    b = MAPB
    k(f"""
    s_lshr_b32 s44, s4, {b}
    s_lshl_b32 s44, s44, {b+1}
    s_lshr_b32 s6, s5, {4-b}
    s_add_u32 s44, s44, s6
    s_and_b32 s45, s4, {(1<<b)-1}
    s_lshl_b32 s45, s45, {4-b}
    s_and_b32 s6, s5, {(1<<(4-b))-1}
    s_add_u32 s45, s45, s6
    """)
    if early:
        early()
    build_ws_srd(k)


def load_stats(k, st_base, s_tb, vdst, vaddr, stmp):
    k(f"""
    v_lshlrev_b32 v{vaddr}, 17, v3
    v_lshl_add_u32 v{vaddr}, v2, 3, v{vaddr}
    s_lshl_b32 s{stmp}, s{s_tb}, 8
    s_add_u32 s{stmp}, s{stmp}, {st_base}
    """)
    tok = None
    for p in range(8):
        tok = k(f"buffer_load_dwordx2 v[{vdst+2*p}:{vdst+2*p+1}], v{vaddr}, {SRD_WS}, s{stmp} offen{SC}")
        if p < 7:
            k(f"s_add_u32 s{stmp}, s{stmp}, 16384")
    return tok


def reduce_stats(k, vsrc, vmean, vrstd, ta, tb):
    for st in (4, 2, 1):
        for p in range(st):
            k(f"v_add_f32 v{vsrc+2*p}, v{vsrc+2*p}, v{vsrc+2*(p+st)}")
            k(f"v_add_f32 v{vsrc+2*p+1}, v{vsrc+2*p+1}, v{vsrc+2*(p+st)+1}")
    xhalf_add(k, vsrc, ta, tb)
    xhalf_add(k, vsrc + 1, ta, tb)
    k(f"""
    v_mul_f32 v{vmean}, {fx(1.0/512)}, v{vsrc}
    v_mul_f32 v{vsrc+1}, {fx(1.0/512)}, v{vsrc+1}
    v_fma_f32 v{vsrc+1}, -v{vmean}, v{vmean}, v{vsrc+1}
    v_max_f32 v{vsrc+1}, 0, v{vsrc+1}
    v_add_f32 v{vsrc+1}, {fx(1e-5)}, v{vsrc+1}
    v_rsq_f32 v{vrstd}, v{vsrc+1}
    """)


VMW = 3
BUDGET = int(os.environ.get('BUDGET', '6'))


def slot_w(it):
    if isinstance(it, str):
        return 0
    if it.cls == "mfma" or it.is_trans:
        return 2
    if it.cls == "nop":
        return it.nstates
    if it.cls in ("vload", "vstore"):
        return VMW
    return 1


class Sched:
    def __init__(self, k, budget=None):
        self.k = k
        self.budget = budget or BUDGET
        self.q = {-1: [], 0: [], 1: []}
        self.mark = len(k.items)
        self.period = 2.5
        self.credit = 0.0
        self.tick = 0
        self.uper = 2

    def add(self, text_or_fn, pri=1):
        self.q[pri].append(text_or_fn)

    def addm(self, lines, pri=1):
        for l in lines:
            self.q[pri].append(l)

    def used(self):
        return sum(slot_w(i) for i in self.k.items[self.mark:])

    def mfma_issued(self):
        self.mark = len(self.k.items)

    def _pop(self, pri):
        x = self.q[pri].pop(0)
        if callable(x):
            x()
        else:
            self.k(x)

    def popmem(self):
        self._pop(-1 if self.q[-1] else 0)

    def run(self, reserve=0):
        self.credit = min(self.credit + 1.0 / self.period, 1.5)
        self.tick += 1
        if self.q[-1]:
            if self.tick % self.uper == 1 % self.uper:
                self._pop(-1)
            self.credit = 0.0
        elif self.q[0] and self.credit >= 1.0:
            self._pop(0)
            self.credit -= 1.0
        while self.q[1] and self.used() < self.budget - reserve:
            self._pop(1)

    def flush(self, pri=(-1, 0, 1)):
        for p in pri:
            while self.q[p]:
                self._pop(p)


def out_tile_epilogue(k, acc, res, vt, s_out, st_soff, final, vaddr_out=None, srd_out=None):
    for d in range(8):
        k(f"v_lshlrev_b32 v{vt}, 16, v{res+d}")
        k(f"v_and_b32 v{vt+1}, 0xffff0000, v{res+d}")
        k(f"v_add_f32 v{acc+2*d}, v{acc+2*d}, v{vt}")
        k(f"v_add_f32 v{acc+2*d+1}, v{acc+2*d+1}, v{vt+1}")
        k(f"v_cvt_pk_bf16_f32 v{res+d}, v{acc+2*d}, v{acc+2*d+1}")
    if not final:
        k(f"buffer_store_dwordx4 v[{res}:{res+3}], v1, {SRD_WS}, s{s_out} offen{SC}")
        k(f"buffer_store_dwordx4 v[{res+4}:{res+7}], v1, {SRD_WS}, s{s_out} offen offset:1024{SC}")
        k(f"v_mov_b32 v{vt}, 0")
        k(f"v_mov_b32 v{vt+1}, 0")
        k(f"v_mov_b32 v{vt+2}, {hex(ONES)}")
        for d in range(8):
            k(f"v_dot2_f32_bf16 v{vt}, v{res+d}, v{vt+2}, v{vt}")
            k(f"v_dot2_f32_bf16 v{vt+1}, v{res+d}, v{res+d}, v{vt+1}")
        xhalf_add(k, vt, vt + 2, vt + 3)
        xhalf_add(k, vt + 1, vt + 2, vt + 3)
        k(f"v_lshlrev_b32 v{vt+2}, 3, v2")
        k("s_mov_b32 exec_hi, 0")
        k(f"buffer_store_dwordx2 v[{vt}:{vt+1}], v{vt+2}, {SRD_WS}, s{st_soff} offen{SC}")
        k("s_mov_b64 exec, -1")
    else:
        for b in range(2):
            r = res + 4 * b
            k(f"v_permlane32_swap_b32 v{r}, v{r+2}")
            k(f"v_permlane32_swap_b32 v{r+1}, v{r+3}")
            k(f"buffer_store_dwordx4 v[{r}:{r+3}], v{vaddr_out}, {srd_out}, s{s_out} offen offset:{b*32}")


def xwave_reduce(k, accs, tmp, va):
    for i in range(1, 4):
        k(f"""
        s_xor_b32 s4, s3, {i}
        s_mul_i32 s4, s4, 12288
        s_add_u32 s4, s4, {L_RED + (i-1)*4096}
        v_add_u32 v{va}, s4, v1
        """)
        for q in range(4):
            k(f"ds_write_b128 v{va}, v[{accs[i]+4*q}:{accs[i]+4*q+3}] offset:{q*1024}")
    k(f"""
    s_mul_i32 s4, s3, 12288
    s_add_u32 s4, s4, {L_RED}
    v_add_u32 v{va}, s4, v1
    """)
    k.wait_lg0()
    k("s_barrier")
    toks = {}
    for q in range(4):
        for j in range(3):
            r = tmp + j * 16 + 4 * q
            toks[(j, q)] = k(f"ds_read_b128 v[{r}:{r+3}], v{va} offset:{j*4096+q*1024}")
    for q in range(4):
        k.wait_lg(toks[(1, q)])
        for i in range(4):
            r = 4 * q + i
            k(f"v_add_f32 v{tmp+r}, v{tmp+r}, v{tmp+16+r}")
        k.wait_lg(toks[(2, q)])
        for i in range(4):
            r = 4 * q + i
            k(f"v_add_f32 v{accs[0]+r}, v{accs[0]+r}, v{tmp+32+r}")
        for i in range(4):
            r = 4 * q + i
            k(f"v_add_f32 v{accs[0]+r}, v{accs[0]+r}, v{tmp+r}")
    return accs[0]


def xstat_loop(k, sc, items, stage_sync, mfma_emit, fill, ring_frags, vcs, D=7, NW=8, B=4, wbase=128):
    vl = [1, 5]
    tok = {}
    N = len(items)

    def rd(n):
        if n >= N:
            return
        kind, idx, _ = items[n]
        wr = wbase + (n % NW) * 4
        if kind == "w":
            if idx % 16 == 0:
                stage_sync(idx // 16)
            off = (idx % ring_frags) * 1024
            tok[n] = k(f"ds_read_b128 a[{wr}:{wr+3}], v{vl[off >> 16]} offset:{off & 0xffff}")
        else:
            tok[n] = k(f"ds_read_b64 a[{wr}:{wr+1}], v{vcs} offset:{idx*256}")

    for n in range(D):
        rd(n)
    for j in range(N):
        if j % B == 0:
            k.wait_lg(tok[min(j + B - 1, N - 1)])
        wr = wbase + (j % NW) * 4
        mfma_emit(j, items[j], f"a[{wr}:{wr+3}]")
        sc.mfma_issued()
        rd(j + D)
        fill(j, items[j])
        sc.run(reserve=1 if (j + 1) % B == 0 else 0)


def mean_frag(side, vmean, mf):
    side(f"""
    v_sub_f32 v{mf+2}, 0, v{vmean}
    v_cndmask_b32 v{mf+2}, 0, v{mf+2}, s[52:53]
    v_cvt_pk_bf16_f32 v{mf}, v{mf+2}, v{mf+2}
    v_lshlrev_b32 v{mf+3}, 16, v{mf}
    v_sub_f32 v{mf+3}, v{mf+2}, v{mf+3}
    v_cvt_pk_bf16_f32 v{mf+1}, v{mf+3}, 0
    v_mov_b32 v{mf+2}, 0
    v_mov_b32 v{mf+3}, 0
    """)


class XLoader:
    def __init__(self, k, base_const, s_tb):
        self.k = k
        self.tok = {}
        k(f"""
        s_lshl_b32 s12, s{s_tb}, 15
        s_add_u32 s12, s12, {base_const}
        s_and_b32 s15, s45, {7 if ROT else 0}
        s_lshl_b32 s15, s15, 12
        s_add_u32 s10, s12, s15
        """)

    def issue(self, s):
        k = self.k
        self.tok[s] = k(f"buffer_load_dwordx4 a[{4*s}:{4*s+3}], v1, {SRD_WS}, s10 offen offset:{(s%4)*1024}{SC}")
        if s % 4 == 3 and s < 31:
            k("""
            s_add_u32 s15, s15, 4096
            s_and_b32 s15, s15, 0x7fff
            s_add_u32 s10, s12, s15
            """)


class WStream:
    def __init__(self, k, s_base, ring_stages):
        self.k, self.s_base, self.ring = k, s_base, ring_stages
        self.tok = {}

    def start(self, base_const, per_idx):
        self.k(f"""
        s_mul_i32 s{self.s_base}, s45, {0 if FAKEW else per_idx}
        s_add_u32 s{self.s_base}, s{self.s_base}, {base_const}
        """)
        self.tok = {}

    def pieces(self, st):
        k = self.k

        def first():
            k(f"s_add_u32 s51, s{self.s_base}, s50")
            k(f"s_add_u32 s51, s51, {st*16384}")
            k(f"s_add_u32 m0, s50, {(st % self.ring)*16384}")
            k(f"buffer_load_dwordx4 v1, {SRD_WS}, s51 offen lds")

        def rest(i):
            t = k(f"buffer_load_dwordx4 v1, {SRD_WS}, s51 offen offset:{i*1024} lds")
            if i == 3:
                self.tok[st] = t

        return [first] + [lambda i=i: rest(i) for i in (1, 2, 3)]

    def issue(self, st):
        for f in self.pieces(st):
            f()

    def issue_by_stage(self, st0, nst=3):
        k = self.k
        _lab[0] += 1
        L = f"bys{_lab[0]}"
        k(f"""
        s_sub_u32 s4, s3, 1
        s_cmp_ge_u32 s4, {nst}
        s_cbranch_scc1 {L}
        s_lshl_b32 s4, s4, 14
        s_add_u32 s51, s{self.s_base}, s4
        s_add_u32 s51, s51, {st0*16384}
        s_add_u32 s4, s4, {(st0 % self.ring)*16384}
        """)
        for q in range(4):
            k("s_mov_b32 m0, s4")
            for i in range(4):
                t = k(f"buffer_load_dwordx4 v1, {SRD_WS}, s51 offen offset:{i*1024} lds")
            if q < 3:
                k("s_add_u32 s51, s51, 4096")
                k("s_add_u32 s4, s4, 4096")
        k.label(L)
        for st in range(st0, st0 + nst):
            self.tok[st] = t


_lab = [0]


def raw(k, text):
    for line in text.strip().split("\n"):
        line = line.strip()
        if not line:
            continue
        if line.endswith(":"):
            k.label(line[:-1])
            continue
        i = Ins(line)
        for kk, r in i.wr | i.rd:
            if kk == "v":
                k.maxv = max(k.maxv, r)
            elif kk == "s" and r < 102:
                k.maxs = max(k.maxs, r)
        k.items.append(i)


def signal(k, sid, glob=False):
    _lab[0] += 1
    L = f"sig{_lab[0]}"
    k.wait_vm0()
    k("s_barrier")
    if glob:
        raw(k, f"""
        s_cmp_lg_u32 s3, 0
        s_cbranch_scc1 {L}
        s_lshl_b32 s4, s44, 8
        s_add_u32 s4, s4, {CNT + sid*4096}
        v_mov_b32 v8, 1
        v_mov_b32 v9, 0
        s_mov_b64 exec, 1
        buffer_atomic_add v8, v9, {SRD_WS}, s4 offen sc0 sc1
        s_waitcnt vmcnt(0)
        v_readfirstlane_b32 s5, v8
        s_mov_b64 exec, -1
        s_cmp_lg_u32 s5, 15
        s_cbranch_scc1 {L}
        s_mov_b32 s4, {CNT + (sid+1)*4096}
        v_mov_b32 v8, 1
        v_lshlrev_b32 v9, 8, v0
        s_mov_b64 exec, 0xffff
        buffer_atomic_add v8, v9, {SRD_WS}, s4 offen sc1
        s_mov_b64 exec, -1
        {L}:
        """)
        return
    raw(k, f"""
    s_cmp_lg_u32 s3, 0
    s_cbranch_scc1 {L}
    s_lshl_b32 s4, s44, 8
    s_add_u32 s4, s4, {CNT + sid*4096}
    v_mov_b32 v8, 1
    v_mov_b32 v9, 0
    s_mov_b64 exec, 1
    buffer_atomic_add v8, v9, {SRD_WS}, s4 offen sc1
    s_mov_b64 exec, -1
    {L}:
    """)


def wait_sync(k, sid, all_clusters):
    _lab[0] += 1
    L = f"wt{_lab[0]}"
    if all_clusters:
        setup = f"""
        s_mov_b32 s4, {CNT + sid*4096}
        v_lshlrev_b32 v9, 8, v0
        s_mov_b64 exec, 0xffff
        """
    else:
        setup = f"""
        s_lshl_b32 s4, s44, 8
        s_add_u32 s4, s4, {CNT + sid*4096}
        v_mov_b32 v9, 0
        s_mov_b64 exec, 1
        """
    raw(k, f"""
    s_cmp_lg_u32 s3, 0
    s_cbranch_scc1 {L}_done
    {setup}
    s_mov_b32 s5, 0
    {L}_loop:
    buffer_load_dword v8, v9, {SRD_WS}, s4 offen sc1
    s_add_u32 s5, s5, 1
    s_waitcnt vmcnt(0)
    v_cmp_gt_u32 vcc, 16, v8
    s_cmp_gt_u32 s5, 0x40000
    s_cbranch_scc1 {L}_out
    s_nop 1
    s_cbranch_vccnz {L}_loop
    {L}_out:
    s_mov_b64 exec, -1
    {L}_done:
    """)
    k("s_barrier")


def cs_prep(k, gu, qkv, B0):
    toks = []
    if gu:
        k(f"""
        s_mul_i32 s9, s45, {7*128}
        s_lshl_b32 s10, s3, 8
        s_add_u32 s9, s9, s10
        s_add_u32 s9, s9, {CS_GU}
        v_lshlrev_b32 v220, 2, v0
        """)
        for p in range(8):
            t = k(f"buffer_load_dword v{B0+p}, v220, {SRD_WS}, s9 offen")
            if p < 7:
                k(f"s_add_u32 s9, s9, {3584*4}")
    if qkv:
        k(f"""
        s_mul_i32 s9, s45, 384
        s_and_b32 s10, s3, 1
        s_lshl_b32 s10, s10, 8
        s_add_u32 s9, s9, s10
        s_add_u32 s9, s9, {CS_QKV}
        v_lshlrev_b32 v220, 2, v0
        """)
        for p in range(8):
            t = k(f"buffer_load_dword v{B0+8+p}, v220, {SRD_WS}, s9 offen")
            if p < 7:
                k("s_add_u32 s9, s9, 6144")

    def fin():
        k.wait_vm(t)
        for base, on in ((B0, gu), (B0 + 8, qkv)):
            if not on:
                continue
            for st in (4, 2, 1):
                for p in range(st):
                    k(f"v_add_f32 v{base+p}, v{base+p}, v{base+p+st}")
        for base, on, lb, wm in ((B0, gu, L_CSGU, 3), (B0 + 8, qkv, L_CSQKV, 1)):
            if not on:
                continue
            k(f"""
            v_cvt_pk_bf16_f32 v{base+3}, v{base}, 0
            s_and_b32 s9, s3, {wm}
            s_lshl_b32 s9, s9, 9
            v_lshlrev_b32 v{base+1}, 16, v{base+3}
            v_sub_f32 v{base+1}, v{base}, v{base+1}
            s_add_u32 s9, s9, {lb}
            v_cvt_pk_bf16_f32 v{base+2}, v{base}, v{base+1}
            v_lshl_add_u32 v4, v0, 3, s9
            ds_write_b64 v4, v[{base+2}:{base+3}]
            """)

    return fin


def wo_reg(idx):
    return f"a[{160+4*idx}:{163+4*idx}]" if idx < 24 else f"v[{224+4*(idx-24)}:{227+4*(idx-24)}]"


def wd_reg(idx):
    if idx < 24:
        return f"a[{160+4*idx}:{163+4*idx}]"
    if idx < 44:
        return f"v[{176+4*(idx-24)}:{179+4*(idx-24)}]"
    if idx < 52:
        return f"a[{128+4*(idx-44)}:{131+4*(idx-44)}]"
    return f"v[{96+4*(idx-52)}:{99+4*(idx-52)}]"


class WoPref:
    def __init__(self, k):
        self.k = k
        self.tok = {}
        self.next = 0

    def start(self):
        k = self.k
        k(f"""
        s_and_b32 s4, s45, {0 if FAKEW else 3}
        s_lshl_b32 s46, s4, 17
        s_lshl_b32 s4, s3, 15
        s_add_u32 s46, s46, s4
        s_add_u32 s46, s46, {P_WO}
        """)
        for i in range(4):
            k(f"s_xor_b32 s4, s3, {i}")
            k(f"s_lshl_b32 s4, s4, 10")
            k(f"v_add_u32 v{216+i}, s4, v1")
        self.tok = {}
        self.next = 0

    def issue(self, n=1):
        k = self.k
        for _ in range(n):
            idx = self.next
            if idx >= 32:
                return
            self.next += 1
            self.tok[idx] = k(f"buffer_load_dwordx4 {wo_reg(idx)}, v{216+idx%4}, {SRD_WS}, s46 offen")
            if idx % 4 == 3:
                k("s_add_u32 s46, s46, 4096")


class WdPref:
    def __init__(self, k):
        self.k = k
        self.tok = {}
        self.next = 0

    def start(self):
        k = self.k
        k(f"""
        s_and_b32 s4, s45, {0 if FAKEW else 7}
        s_mul_i32 s47, s4, {224*1024}
        s_mul_i32 s4, s3, {56*1024}
        s_add_u32 s47, s47, s4
        s_add_u32 s47, s47, {P_WD}
        s_and_b32 s4, s3, 1
        s_lshl_b32 s4, s4, 10
        v_add_u32 v14, s4, v1
        v_xor_b32 v15, 0x400, v14
        """)
        self.tok = {}
        self.next = 0

    def issue(self, n=1, limit=56):
        k = self.k
        for _ in range(n):
            idx = self.next
            if idx >= limit:
                return
            self.next += 1
            self.tok[idx] = k(f"buffer_load_dwordx4 {wd_reg(idx)}, v{14+idx%2}, {SRD_WS}, s47 offen offset:{((idx//2)%2)*2048}")
            if idx % 4 == 3:
                k("s_add_u32 s47, s47, 4096")


def kv_epi_list():
    AK, AV, RR, PKF, VF, T0 = 64, 80, 48, 112, 120, 128
    L = []
    for r in range(0, 16, 2):
        a, b, ta, tb = AK + r, AK + r + 1, T0, T0 + 1
        L += [f"v_mul_f32 v{a}, v{a}, v{RR+r}", f"v_mul_f32 v{b}, v{b}, v{RR+r+1}",
              f"v_mul_f32 v{ta}, {fx(LOG2E)}, v{a}", f"v_mul_f32 v{tb}, {fx(LOG2E)}, v{b}",
              f"v_min_f32 v{ta}, 0, v{ta}", f"v_min_f32 v{tb}, 0, v{tb}",
              f"v_exp_f32 v{ta}, v{ta}", f"v_exp_f32 v{tb}, v{tb}",
              f"v_max_f32 v{a}, 0, v{a}", f"v_max_f32 v{b}, 0, v{b}",
              f"v_add_f32 v{ta}, {fx(1e-6)}, v{ta}", f"v_add_f32 v{tb}, {fx(1e-6)}, v{tb}",
              f"v_add_f32 v{a}, v{a}, v{ta}", f"v_add_f32 v{b}, v{b}, v{tb}",
              f"v_cvt_pk_bf16_f32 v{PKF+r//2}, v{a}, v{b}"]
        a, b = AV + r, AV + r + 1
        L += [f"v_mul_f32 v{a}, v{a}, v{RR+r}", f"v_mul_f32 v{b}, v{b}, v{RR+r+1}",
              f"v_cvt_pk_bf16_f32 v{VF+r//2}, v{a}, v{b}"]
    return L


def phase1(k, l, ws, wop, standalone=False, cs_fin=None):
    k.comment(f"==== P1 layer {l}")
    k("""
    s_lshl_b32 s8, s44, 2
    s_add_u32 s8, s8, s3
    """)
    AK, AV, AQ = 64, 80, 96
    VST = 16
    xl = XLoader(k, XA[l], 8)
    sc = Sched(k)
    XPRE = 11
    for s in range(XPRE):
        xl.issue(s)
        if standalone and s in (3, 7):
            ws.issue(s // 4)
    if standalone:
        cs_fin()
        k.wait_lg0()
        k("s_barrier")
        sc.uper = 1
    tstb = []
    for s in range(XPRE, 32):
        sc.add(lambda s=s: xl.issue(s), -1)
        if standalone and s % 4 == 3 and 15 <= s < 31:
            sc.addm(ws.pieces(2 + (s - 15) // 4), -1)
        if s == STPOS:
            sc.add(lambda: tstb.append(load_stats(k, ST_A[l], 8, VST, 4, 9)), -1)
    if wop is not None:
        for i in range(32):
            sc.add(lambda: wop.issue(1), 0)
    VCS = 11
    MF, RR = 40, 48
    VMEAN, VRSTD = 6, 7
    k(f"""
    v_lshlrev_b32 v{VCS}, 3, v2
    v_add_u32 v{VCS}, {L_CSQKV}, v{VCS}
    """)
    side = Kern("tmp")
    reduce_stats(side, VST, VMEAN, VRSTD, 8, 9)
    mean_frag(side, VMEAN, MF)
    side(f"""
    s_lshl_b32 s13, s3, 8
    s_add_u32 s13, s13, {L_STAT}
    v_lshl_add_u32 v8, v2, 2, s13
    v_lshl_add_u32 v9, v3, 4, s13
    ds_write_b32 v8, v{VRSTD}
    """)
    for q in range(4):
        side(f"ds_read_b128 v[{RR+4*q}:{RR+4*q+3}], v9 offset:{q*32}")
    side(f"v_mul_f32 v13, {fx(LOG2E)}, v{VRSTD}")
    PKF, VF = 112, 120
    T0 = 128
    ZP = 12
    KVA = 144
    sidetok = []

    def kv_epilogue():
        sc.add(lambda: k.wait_lg(sidetok[0]))
        sc.addm(kv_epi_list())

    def stage_sync(st):
        if st == 0:
            k.wait_vm(xl.tok[0])
        while st not in ws.tok:
            sc.popmem()
        k.wait_vm(ws.tok[st])
        if standalone or st == 0:
            k("s_barrier")
        if st in (0, 4):
            stamp(k, {0: 2, 4: 3}[st])

    items = []
    for s in range(32):
        items += [("w", 2 * s, (AK, s)), ("w", 2 * s + 1, (AV, s))]
    items += [("c", 0, AK), ("c", 1, AV)]
    items += [("w", 64 + s, (AQ, s)) for s in range(32)] + [("c", 2, AQ)]

    def mfma_emit(j, it, w):
        if it[0] == "w":
            acc, s = it[2]
            x = f"a[{4*s}:{4*s+3}]"
            cin = "0" if s == 0 else f"v[{acc}:{acc+15}]"
            if acc != AQ:
                while s not in xl.tok:
                    sc.popmem()
                k.wait_vm(xl.tok[s])
                if FINE and acc == AK and s in (8, 16, 24, 31):
                    stamp(k, {8: 3, 16: 4, 24: 5, 31: 6}[s])
        else:
            acc = it[2]
            x = f"v[{MF}:{MF+3}]"
            cin = f"v[{acc}:{acc+15}]"
        if acc == AQ:
            k(f"v_mfma_f32_32x32x16_bf16 v[{acc}:{acc+15}], {w}, {x}, {cin}")
        else:
            k(f"v_mfma_f32_32x32x16_bf16 v[{acc}:{acc+15}], {x}, {w}, {cin}")

    def fill(j, it):
        if j == STUSE:
            sc.add(lambda: k.wait_vm(tstb[0]))
            for x in side.items:
                sc.add(x.text)
            sc.add(lambda: sidetok.append(k.lg_n))
        if j == 62:
            sc.flush((1,))
        if j == 67:
            kv_epilogue()

    xstat_loop(k, sc, items, stage_sync, mfma_emit, fill, 96, VCS)
    sc.flush((1,))
    p1_tail(k, l)


def p1_tail(k, l, before_barrier=None):
    stamp_ = globals()["stamp"]

    def stamp(k, i):
        if l == 1 or i == 4:
            stamp_(k, i)

    AQ, PKF, VF, T0, ZP, KVA, VRSTD = 96, 112, 120, 128, 12, 144, 7
    stamp(k, 4)
    k(f"v_mfma_f32_32x32x16_bf16 v[{KVA}:{KVA+15}], v[{PKF}:{PKF+3}], v[{VF}:{VF+3}], 0")
    k(f"v_mfma_f32_32x32x16_bf16 v[{KVA}:{KVA+15}], v[{PKF+4}:{PKF+7}], v[{VF+4}:{VF+7}], v[{KVA}:{KVA+15}]")
    k(f"v_mov_b32 v{ZP}, 0")
    k(f"v_mov_b32 v{T0}, {hex(ONES)}")
    for d in range(8):
        k(f"v_dot2_f32_bf16 v{ZP}, v{PKF+d}, v{T0}, v{ZP}")
    k(f"""
    s_mul_i32 s13, s3, 2176
    s_add_u32 s13, s13, {L_KVP}
    v_and_b32 v8, 15, v0
    v_lshlrev_b32 v8, 5, v8
    v_lshl_add_u32 v8, v3, 4, v8
    v_add_u32 v8, s13, v8
    v_bfe_u32 v4, v0, 3, 2
    v_mul_u32_u24 v4, 544, v4
    v_bfe_u32 v9, v0, 2, 1
    v_lshl_add_u32 v4, v9, 4, v4
    v_and_b32 v9, 3, v0
    v_lshl_add_u32 v4, v9, 2, v4
    v_add_u32 v4, s13, v4
    """)
    xhalf_add(k, ZP, T0, T0 + 1)
    k(f"""
    s_mov_b32 exec_lo, 0x0000ffff
    s_mov_b32 exec_hi, 0x0000ffff
    ds_write_b128 v8, v[{KVA}:{KVA+3}]
    ds_write_b128 v8, v[{KVA+4}:{KVA+7}] offset:544
    s_mov_b32 exec_lo, 0xffff0000
    s_mov_b32 exec_hi, 0xffff0000
    ds_write_b128 v8, v[{KVA+8}:{KVA+11}] offset:1088
    ds_write_b128 v8, v[{KVA+12}:{KVA+15}] offset:1632
    s_mov_b64 exec, -1
    ds_write_b32 v4, v{ZP} offset:512
    """)
    QF = 136

    def q_epi(r0, r1):
        for r in range(r0, r1, 2):
            a, b, ta, tb = AQ + r, AQ + r + 1, T0, T0 + 1
            for t in (f"v_mul_f32 v{ta}, v{a}, v13", f"v_mul_f32 v{tb}, v{b}, v13",
                      f"v_mul_f32 v{a}, v{a}, v{VRSTD}", f"v_mul_f32 v{b}, v{b}, v{VRSTD}",
                      f"v_min_f32 v{ta}, 0, v{ta}", f"v_min_f32 v{tb}, 0, v{tb}",
                      f"v_exp_f32 v{ta}, v{ta}", f"v_exp_f32 v{tb}, v{tb}",
                      f"v_max_f32 v{a}, 0, v{a}", f"v_max_f32 v{b}, 0, v{b}",
                      f"v_add_f32 v{ta}, {fx(1e-6)}, v{ta}", f"v_add_f32 v{tb}, {fx(1e-6)}, v{tb}",
                      f"v_add_f32 v{a}, v{a}, v{ta}", f"v_add_f32 v{b}, v{b}, v{tb}",
                      f"v_cvt_pk_bf16_f32 v{QF+r//2}, v{a}, v{b}"):
                k(t)

    k(f"""
    s_lshl_b32 s13, s3, 8
    v_lshl_add_u32 v8, v0, 2, s13
    v_add_u32 v9, {L_KVP}, v8
    s_mul_i32 s14, s45, 2176
    s_add_u32 s14, s14, {KVB[l]}
    """)
    q_epi(0, 2)
    if before_barrier:
        before_barrier()
    k.wait_lg0()
    k("s_barrier")
    for i in range(3):
        for w in range(4):
            k(f"ds_read_b32 v{16+4*i+w}, v9 offset:{w*2176+i*1024}")
    q_epi(2, 4)
    k.wait_lg0()
    for i in range(3):
        k(f"v_add_f32 v{16+4*i}, v{16+4*i}, v{17+4*i}")
        k(f"v_add_f32 v{18+4*i}, v{18+4*i}, v{19+4*i}")
    for i in range(3):
        k(f"v_add_f32 v{16+4*i}, v{16+4*i}, v{18+4*i}")
    k(f"buffer_atomic_add_f32 v16, v8, {SRD_WS}, s14 offen{SC}")
    k(f"buffer_atomic_add_f32 v20, v8, {SRD_WS}, s14 offen offset:1024{SC}")
    k(f"""
    s_cmp_eq_u32 s3, 0
    s_cselect_b32 exec_lo, -1, 1
    s_mov_b32 exec_hi, 0
    s_cselect_b32 s15, 0, 0x10000000
    s_add_u32 s14, s14, s15
    buffer_atomic_add_f32 v24, v8, {SRD_WS}, s14 offen offset:2048{SC}
    s_mov_b64 exec, -1
    s_lshl_b32 s13, s44, 2
    s_add_u32 s13, s13, s3
    s_lshl_b32 s13, s13, 15
    s_lshl_b32 s14, s45, 11
    s_add_u32 s13, s13, s14
    s_add_u32 s13, s13, {PQ[l]}
    """)
    stamp(k, 5)
    q_epi(4, 8)
    k(f"buffer_store_dwordx4 v[{QF}:{QF+3}], v1, {SRD_WS}, s13 offen{SC}")
    q_epi(8, 16)
    k(f"buffer_store_dwordx4 v[{QF+4}:{QF+7}], v1, {SRD_WS}, s13 offen offset:1024{SC}")
    stamp(k, 6)


STPOS = 15
STUSE = 40


def red_write(k, acc, i, va):
    L = [f"s_xor_b32 s4, s3, {i}", "s_mul_i32 s4, s4, 12288", f"s_add_u32 s4, s4, {L_RED + (i-1)*4096}",
         f"v_add_u32 v{va}, s4, v1"]
    L += [f"ds_write_b128 v{va}, v[{acc+4*q}:{acc+4*q+3}] offset:{q*1024}" for q in range(4)]
    return L


def red_addr(va):
    return ["s_mul_i32 s4, s3, 12288", f"s_add_u32 s4, s4, {L_RED}", f"v_add_u32 v{va}, s4, v1"]


def phase2_pre(k, l):
    RES = 176
    k(f"""
    s_lshl_b32 s6, s44, 2
    s_lshr_b32 s7, s45, 2
    s_add_u32 s6, s6, s7
    s_and_b32 s7, s45, 3
    s_lshl_b32 s11, s6, 15
    s_lshl_b32 s12, s7, 13
    s_add_u32 s11, s11, s12
    s_lshl_b32 s12, s3, 11
    s_add_u32 s11, s11, s12
    s_add_u32 s12, s11, {XA[l]}
    s_add_u32 s11, s11, {X1[l]}
    buffer_load_dwordx4 v[{RES}:{RES+3}], v1, {SRD_WS}, s12 offen{SC}
    """)
    tres = k(f"buffer_load_dwordx4 v[{RES+4}:{RES+7}], v1, {SRD_WS}, s12 offen offset:1024{SC}")
    k(f"""
    s_lshl_b32 s13, s7, 2
    s_add_u32 s13, s13, s3
    s_lshl_b32 s13, s13, 14
    s_lshl_b32 s14, s6, 8
    s_add_u32 s13, s13, s14
    s_add_u32 s13, s13, {ST_1[l]}
    v_min_u32 v7, 16, v2
    v_lshlrev_b32 v7, 5, v7
    v_lshl_add_u32 v7, v3, 4, v7
    s_mul_i32 s8, s3, {8*1088}
    s_add_u32 s8, s8, {KVB[l]}
    s_lshl_b32 s9, s6, 15
    s_lshl_b32 s10, s3, 13
    s_add_u32 s9, s9, s10
    s_add_u32 s9, s9, {PQ[l]}
    """)
    return tres


def phase2(k, l, wop, tres, side_mem, late_mem=(), wo_inline=False):
    k.comment(f"==== P2 layer {l}")
    KVR = 16
    PQR = 128
    ACC = [80, 96, 112, 128]
    D = [144, 160]
    RES = 176
    OF = [184 + 4 * i for i in range(8)]
    AF = [8, 12]
    tpq = {}
    sc = Sched(k)

    def ld(i):
        k(f"buffer_load_dwordx4 v[{KVR+8*i}:{KVR+8*i+3}], v7, {SRD_WS}, s8 offen offset:{(i%2)*1088}{SC}")
        k(f"buffer_load_dwordx4 v[{KVR+8*i+4}:{KVR+8*i+7}], v7, {SRD_WS}, s8 offen offset:{(i%2)*1088+544}{SC}")
        if i % 2 == 1:
            k("s_add_u32 s8, s8, 2176")
        tpq[i] = k(f"buffer_load_dwordx4 a[{PQR+4*i}:{PQR+4*i+3}], v1, {SRD_WS}, s9 offen offset:{(i%4)*1024}{SC}")
        if i % 4 == 3:
            k("s_add_u32 s9, s9, 4096")

    nld = [0]

    def ld_next():
        i = nld[0]
        if i >= 8:
            return
        nld[0] += 1
        ld(i)
        if wo_inline:
            wop.issue(4)

    for i in range(2 if wo_inline else 5):
        ld_next()
    sc.addm(side_mem, 0)

    def need(i):
        while nld[0] <= i:
            ld_next()
        k.wait_vm(tpq[i])
        ld_next()

    def attn_cvt(i):
        af = AF[i % 2]
        return [lambda: need(i)] + [f"v_cvt_pk_bf16_f32 v{af+d}, v{KVR+8*i+2*d}, v{KVR+8*i+2*d+1}" for d in range(4)]

    def attn_mfma(i):
        af, dd = AF[i % 2], D[i % 2]
        k(f"v_mfma_f32_32x32x16_bf16 v[{dd}:{dd+15}], v[{af}:{af+3}], a[{PQR+4*i}:{PQR+4*i+3}], 0")
        sc.mfma_issued()

    def attn_post(i):
        dd, of = D[i % 2], OF[i]
        L = [f"v_add_f32 v{dd+8}, {fx(1e-6)}, v{dd+8}", f"v_rcp_f32 v{dd+8}, v{dd+8}", "s_nop 0"]
        L += [f"v_mul_f32 v{dd+j}, v{dd+j}, v{dd+8}" for j in range(8)]
        L += [f"v_cvt_pk_bf16_f32 v{of+d}, v{dd+2*d}, v{dd+2*d+1}" for d in range(4)]
        return L

    def main_mfma(i, c):
        of = OF[i]
        while (i * 4 + c) not in wop.tok:
            sc.popmem()
        k.wait_vm(wop.tok[i * 4 + c])
        cin = "0" if i == 0 else f"v[{ACC[c]}:{ACC[c]+15}]"
        k(f"v_mfma_f32_32x32x16_bf16 v[{ACC[c]}:{ACC[c]+15}], {wo_reg(i*4+c)}, v[{of}:{of+3}], {cin}")
        sc.mfma_issued()

    sc.addm(attn_cvt(0)); sc.flush((1,)); attn_mfma(0)
    stamp(k, 2)
    sc.addm(attn_cvt(1)); sc.flush((1,)); attn_mfma(1)
    sc.addm(attn_cvt(2)); sc.flush((1,))
    sc.addm(attn_post(0)); sc.flush((1,))
    first = (1, 2, 3, 0) if wo_inline else (1, 2)
    for i in range(8):
        if i + 2 < 8:
            attn_mfma(i + 2)
        if i + 1 < 8:
            sc.addm(attn_post(i + 1))
        if i + 3 < 8:
            sc.addm(attn_cvt(i + 3))
        sc.run()
        for c in first:
            main_mfma(i, c)
            sc.run()
        sc.flush((1,))
    sc.addm(late_mem, 0)
    if not wo_inline:
        for n, c in enumerate((3, 0)):
            for i in range(8):
                main_mfma(i, c)
                if i == 1:
                    if n == 0:
                        sc.addm(red_write(k, ACC[1], 1, 4) + red_write(k, ACC[2], 2, 4))
                    else:
                        sc.addm(red_write(k, ACC[3], 3, 4) + red_addr(6))
                sc.run()
            sc.flush((1,))
    else:
        for c in (1, 2, 3):
            sc.addm(red_write(k, ACC[c], c, 4))
        sc.addm(red_addr(6))
    sc.flush()
    stamp(k, 3)
    k.wait_lg0()
    k("s_barrier")
    tmp = 16
    toks = {}
    for q in range(4):
        for j in range(3):
            r = tmp + j * 16 + 4 * q
            toks[(j, q)] = k(f"ds_read_b128 v[{r}:{r+3}], v6 offset:{j*4096+q*1024}")
    a = ACC[0]
    for q in range(4):
        k.wait_lg(toks[(1, q)])
        for i in range(0, 4, 2):
            r = 4 * q + i
            k(f"v_pk_add_f32 v[{tmp+r}:{tmp+r+1}], v[{tmp+r}:{tmp+r+1}], v[{tmp+16+r}:{tmp+17+r}]")
        k.wait_lg(toks[(2, q)])
        for i in range(0, 4, 2):
            r = 4 * q + i
            k(f"v_pk_add_f32 v[{a+r}:{a+r+1}], v[{a+r}:{a+r+1}], v[{tmp+32+r}:{tmp+33+r}]")
        for i in range(0, 4, 2):
            r = 4 * q + i
            k(f"v_pk_add_f32 v[{a+r}:{a+r+1}], v[{a+r}:{a+r+1}], v[{tmp+r}:{tmp+r+1}]")
    stamp(k, 4)
    k.wait_vm(tres)
    out_tile_epilogue(k, a, RES, 8, 11, 13, False)
    stamp(k, 5)


def phase3(k, l, ws, wdp, early=()):
    k.comment(f"==== P3 layer {l}")
    k("""
    s_lshl_b32 s8, s44, 2
    s_add_u32 s8, s8, s3
    """)
    VST = 16
    xl = XLoader(k, X1[l], 8)
    sc = Sched(k)
    XPRE = 11
    tstb = []
    for s in range(XPRE):
        xl.issue(s)
    for s in range(XPRE, 32):
        sc.add(lambda s=s: xl.issue(s), -1)
        if s == STPOS:
            sc.add(lambda: tstb.append(load_stats(k, ST_1[l], 8, VST, 4, 9)), -1)
    for st in early:
        sc.addm(ws.pieces(st), 0)
    ACC = [64 + 16 * t for t in range(7)]
    VCS = 9
    k(f"""
    v_lshlrev_b32 v{VCS}, 3, v2
    v_add_u32 v{VCS}, {L_CSGU}, v{VCS}
    s_mul_i32 s13, s8, {112*1024}
    s_mul_i32 s14, s45, {7*1024}
    s_add_u32 s13, s13, s14
    s_add_u32 s13, s13, {HB[l]}
    """)
    wdp.start()
    VMEAN, VRSTD = 6, 7
    MF = 40
    c0 = -2.0 * math.sqrt(2.0 / math.pi) * LOG2E
    C1, C3, IR2 = 10, 11, 12
    side = Kern("tmp")
    reduce_stats(side, VST, VMEAN, VRSTD, 8, 4)
    mean_frag(side, VMEAN, MF)
    side(f"""
    v_mul_f32 v{C1}, {fx(c0)}, v{VRSTD}
    v_mul_f32 v13, v{VRSTD}, v{VRSTD}
    v_mul_f32 v{C3}, {fx(0.044715)}, v13
    v_mul_f32 v{C3}, v{C3}, v{C1}
    v_rcp_f32 v{IR2}, v13
    """)
    T0 = 16
    HP = 32

    def epilogue(t):
        a = ACC[t]
        hp = HP + 4 * (t % 2)
        for j in range(0, 8, 2):
            x0, x1, t0, t1 = a + j, a + j + 1, T0, T0 + 1
            sc.addm([f"v_mul_f32 v{t0}, v{x0}, v{x0}", f"v_mul_f32 v{t1}, v{x1}, v{x1}",
                     f"v_fma_f32 v{t0}, v{t0}, v{C3}, v{C1}", f"v_fma_f32 v{t1}, v{t1}, v{C3}, v{C1}",
                     f"v_mul_f32 v{t0}, v{t0}, v{x0}", f"v_mul_f32 v{t1}, v{t1}, v{x1}",
                     f"v_exp_f32 v{t0}, v{t0}", f"v_exp_f32 v{t1}, v{t1}",
                     f"v_mul_f32 v{x0}, v{x0}, v{x0+8}", f"v_mul_f32 v{x1}, v{x1}, v{x1+8}",
                     f"v_fma_f32 v{t0}, v{t0}, v{IR2}, v{IR2}", f"v_fma_f32 v{t1}, v{t1}, v{IR2}, v{IR2}",
                     f"v_rcp_f32 v{t0}, v{t0}", f"v_rcp_f32 v{t1}, v{t1}",
                     f"v_mul_f32 v{x0}, v{x0}, v{t0}", f"v_mul_f32 v{x1}, v{x1}, v{t1}",
                     f"v_cvt_pk_bf16_f32 v{hp+j//2}, v{x0}, v{x1}"])
        off = (t % 4) * 1024
        if t == 4:
            sc.add("s_add_u32 s13, s13, 4096")
        sc.add(f"buffer_store_dwordx4 v[{hp}:{hp+3}], v1, {SRD_WS}, s13 offen offset:{off}{SC}")

    def stage_sync(st):
        if st == 0:
            k.wait_vm(xl.tok[0])
        while st not in ws.tok:
            sc.popmem()
        k.wait_vm(ws.tok[st])
        if st == 0 or st >= 2:
            k("s_barrier")
        if st in (0, 4, 8):
            stamp(k, {0: 2, 4: 3, 8: 4}[st])
        if 2 <= st < 8:
            sc.addm(ws.pieces(st + 6), 0)

    items = []
    for s in range(32):
        items += [("w", NFIRST * s + t, (t, s)) for t in range(NFIRST)]
    items += [("c", t, t) for t in range(NFIRST)]
    for t in range(NFIRST, 7):
        items += [("w", 32 * t + s, (t, s)) for s in range(32)] + [("c", t, t)]
    NF = NFIRST * 32
    pend = []

    def mfma_emit(j, it, w):
        if it[0] == "w":
            t, s = it[2]
            if j < NF:
                while s not in xl.tok:
                    sc.popmem()
                k.wait_vm(xl.tok[s])
                if FINE and t == 0 and s in (8, 16, 24, 31):
                    stamp(k, {8: 3, 16: 4, 24: 5, 31: 6}[s])
            cin = "0" if s == 0 else f"v[{ACC[t]}:{ACC[t]+15}]"
            x = f"a[{4*s}:{4*s+3}]"
        else:
            t = it[2]
            cin = f"v[{ACC[t]}:{ACC[t]+15}]"
            x = f"v[{MF}:{MF+3}]"
            pend.append((j + 4, t))
        k(f"v_mfma_f32_32x32x16_bf16 v[{ACC[t]}:{ACC[t]+15}], {w}, {x}, {cin}")

    def fill(j, it):
        if j == STUSE:
            sc.add(lambda: k.wait_vm(tstb[0]))
            for x in side.items:
                sc.add(x.text)
        if j == NF - 2:
            sc.flush((1,))
        while pend and pend[0][0] <= j:
            epilogue(pend.pop(0)[1])
        if j >= WD_START and not sc.q[0] and not sc.q[-1] and wdp.next < 44:
            sc.add(lambda: wdp.issue(1, 44), 0)

    xstat_loop(k, sc, items, stage_sync, mfma_emit, fill, 128, VCS)
    sc.flush()
    stamp(k, 5)
    while pend:
        epilogue(pend.pop(0)[1])
    sc.flush()
    stamp(k, 6)


WD_START = 40


def phase4_pre(k, l, final):
    RES = 80
    k(f"""
    s_lshl_b32 s6, s44, 1
    s_lshr_b32 s7, s45, 3
    s_add_u32 s6, s6, s7
    s_and_b32 s7, s45, 7
    s_lshr_b32 s11, s3, 1
    s_lshl_b32 s12, s6, 1
    s_add_u32 s11, s11, s12
    s_and_b32 s12, s3, 1
    s_lshl_b32 s13, s7, 1
    s_add_u32 s12, s12, s13
    s_lshl_b32 s13, s11, 15
    s_lshl_b32 s14, s12, 11
    s_add_u32 s13, s13, s14
    s_add_u32 s14, s13, {X1[l]}
    buffer_load_dwordx4 v[{RES}:{RES+3}], v1, {SRD_WS}, s14 offen{SC}
    """)
    tres = k(f"buffer_load_dwordx4 v[{RES+4}:{RES+7}], v1, {SRD_WS}, s14 offen offset:1024{SC}")
    k(f"""
    s_mul_i32 s10, s3, {28*1024}
    s_add_u32 s10, s10, {HB[l]}
    s_mul_i32 s8, s11, {112*1024}
    s_add_u32 s8, s8, s10
    s_xor_b32 s9, s11, 1
    s_mul_i32 s9, s9, {112*1024}
    s_add_u32 s9, s9, s10
    s_cmp_eq_u32 s7, 7
    s_cselect_b32 s10, 0, s7
    s_lshl_b32 s10, s10, {12 if ROT else 31}
    s_and_b32 s10, s10, 0xffff
    s_add_u32 s6, s9, s10
    """)
    if not final:
        k(f"""
        s_add_u32 s13, s13, {XA[l+1]}
        s_lshl_b32 s14, s12, 14
        s_lshl_b32 s15, s11, 8
        s_add_u32 s14, s14, s15
        s_add_u32 s14, s14, {ST_A[l+1]}
        """)
    else:
        k(f"""
        s_lshl_b32 s13, s11, 15
        s_lshl_b32 s14, s12, 6
        s_add_u32 s13, s13, s14
        v_lshlrev_b32 v6, 10, v2
        v_lshl_add_u32 v6, v3, 4, v6
        """)
    return tres


def phase4(k, l, final, wdp, tres, tail_mem):
    k.comment(f"==== P4 layer {l}")
    ACC = [16, 32, 48, 64]
    RES = 80
    TMP = 112
    tok = {}
    sc = Sched(k)

    def issue(n):
        r = (n % 32) * 4
        tok[n] = k(f"buffer_load_dwordx4 a[{r}:{r+3}], v1, {SRD_WS}, s6 offen offset:{(n%4)*1024}{SC}")
        if n % 4 == 3 and n < 55:
            base = 9 if n + 1 < 28 else 8
            k(f"""
            s_add_u32 s10, s10, 4096
            s_cmp_eq_u32 s10, {7*4096}
            s_cselect_b32 s10, 0, s10
            s_add_u32 s6, s{base}, s10
            """)

    AH = 12
    for n in range(AH):
        issue(n)
    seq = []
    for n in range(28):
        seq += [(n, 2), (n, 3)]
    LT = 4
    for n in range(28, 56 - LT):
        seq += [(n, 1), (n, 0)]
    seq += [(n, 1) for n in range(56 - LT, 56)] + [(n, 0) for n in range(56 - LT, 56)]
    rtok = []
    issued = AH
    for j, (n, ai) in enumerate(seq):
        i = n % 28
        c = ai & 1
        k.wait_vm(tok[n])
        k.wait_vm(wdp.tok[2 * i + c])
        if j in (0, 56):
            stamp(k, 2 if j == 0 else 3)
        a = ACC[ai]
        r = (n % 32) * 4
        cin = "0" if i == 0 else f"v[{a}:{a+15}]"
        k(f"v_mfma_f32_32x32x16_bf16 v[{a}:{a+15}], {wd_reg(2*i+c)}, a[{r}:{r+3}], {cin}")
        sc.mfma_issued()
        if j % 2 == 0 and issued < 56:
            issue(issued)
            issued += 1
        if j == 58:
            sc.addm(red_write(k, ACC[2], 2, 4) + red_write(k, ACC[3], 3, 4) + red_addr(5 + 2))
        if j == 80:
            sc.flush((1,))
            k.wait_lg0()
            k("s_barrier")
            for jj in (1, 2):
                for q in range(4):
                    rr = TMP + jj * 16 + 4 * q
                    sc.add(lambda jj=jj, q=q, rr=rr: rtok.append(k(f"ds_read_b128 v[{rr}:{rr+3}], v7 offset:{jj*4096+q*1024}")))
            sc.add(lambda: k.wait_lg(rtok[-1]))
            sc.addm([f"v_add_f32 v{TMP+16+r_}, v{TMP+16+r_}, v{TMP+32+r_}" for r_ in range(16)])
            sc.addm(tail_mem, 0)
        if j == 112 - LT + 1:
            sc.flush((1,))
            sc.addm(red_write(k, ACC[1], 1, 4))
        sc.run()
    sc.flush()
    stamp(k, 4)
    k.wait_lg0()
    k("s_barrier")
    toks = [k(f"ds_read_b128 v[{TMP+4*q}:{TMP+4*q+3}], v7 offset:{q*1024}") for q in range(4)]
    a = ACC[0]
    for r in range(0, 16, 2):
        k(f"v_pk_add_f32 v[{a+r}:{a+r+1}], v[{a+r}:{a+r+1}], v[{TMP+16+r}:{TMP+17+r}]")
    for q in range(4):
        k.wait_lg(toks[q])
        for r in (4 * q, 4 * q + 2):
            k(f"v_pk_add_f32 v[{a+r}:{a+r+1}], v[{a+r}:{a+r+1}], v[{TMP+r}:{TMP+r+1}]")
    stamp(k, 5)
    k.wait_vm(tres)
    out_tile_epilogue(k, a, RES, 8, 13, 14, final, 6, "s[40:43]")
    stamp(k, 6)


def gen_k1():
    k = Kern("k1_kernel")
    prologue(k, 256, "k1_done")
    common_setup(k)
    fin = cs_prep(k, False, True, 200)
    ws = WStream(k, 48, 8)
    ws.start(P_QKV, 96 * 1024)
    phase1(k, 0, ws, None, standalone=True, cs_fin=fin)
    if STAMP:
        k.wait_vm0()
        stamp(k, 8)
        stamp(k, 9, True)
        stamp_flush(k, 0)
    k.label("k1_done")
    k("s_endpgm")
    return k, (256, 256, LDS_TOTAL)


def gen_mega():
    k = Kern("mega_kernel")
    prologue(k, 256, "mega_done")
    common_setup(k)
    srd(k, 40, 30, 2048 * 512 * 2)
    wop = WoPref(k)
    wdp = WdPref(k)
    wg = WStream(k, 48, 8)
    wq = WStream(k, 49, 8)
    wg.start(P_GU, 224 * 1024)
    wq.start(P_QKV, 96 * 1024)
    pid = [1]

    def end_phase():
        stamp(k, 7)

    def new_phase():
        stamp(k, 8)
        stamp(k, 9, True)
        stamp_flush(k, pid[0])
        pid[0] += 1
        stamp(k, 0, True)
        stamp(k, 1)

    for l in range(2):
        final = l == 1
        if l == 0:
            tres = phase2_pre(k, 0)
            wop.start()
            fins = []
            late = [lambda: fins.append(cs_prep(k, True, True, 64))]
            for st in range(2):
                late += wg.pieces(st)
            phase2(k, 0, wop, tres, [], late, wo_inline=True)
            fins[0]()
            k.wait_lg0()
        else:
            side = []
            for st in range(2, 6):
                side += wg.pieces(st)
            phase2(k, 1, wop, tres, side)
        signal(k, 3 * l + 0)
        end_phase()
        if NOPF:
            wait_sync(k, 3 * l + 0, False)
            new_phase()
            k.wait_vm0()
        if l == 0:
            wg.issue_by_stage(2, 3)
        else:
            wg.issue_by_stage(6, 2)
        if not NOPF:
            wait_sync(k, 3 * l + 0, False)
            new_phase()
        phase3(k, l, wg, wdp, early=(5, 6, 7) if l == 0 else ())
        signal(k, 3 * l + 1)
        end_phase()
        tail = []
        if not final:
            for st in range(3, 6):
                tail += wq.pieces(st)
        tres = phase4_pre(k, l, final)
        if not NOPF:
            wdp.issue(56)
        wait_sync(k, 3 * l + 1, False)
        new_phase()
        wdp.issue(56)
        phase4(k, l, final, wdp, tres, tail)
        if final:
            break
        signal(k, 2)
        end_phase()
        if NOPF:
            wait_sync(k, 2, False)
            new_phase()
            k.wait_vm0()
        wq.issue_by_stage(0, 3)
        wop.start()
        if not NOPF:
            wait_sync(k, 2, False)
            new_phase()
        phase1(k, 1, wq, wop)
        signal(k, 5, glob=True)
        end_phase()
        wg.tok = {}
        if NOPF:
            wait_sync(k, 6, False)
            new_phase()
            k.wait_vm0()
        wg.issue_by_stage(0, 2)
        wop.issue(32)
        tres = phase2_pre(k, 1)
        if not NOPF:
            wait_sync(k, 6, False)
            new_phase()
    if STAMP:
        k.wait_vm0()
        end_phase()
        new_phase()
    k.label("mega_done")
    k("s_endpgm")
    k.label("mega_end")
    return k, (256, 256, LDS_TOTAL)


def pack_params(k):
    k("""
    s_lshl_b32 s4, s2, 1
    s_lshr_b32 s5, s3, 1
    s_add_u32 s4, s4, s5
    s_and_b32 s5, s3, 1
    s_lshl_b32 s6, s5, 1
    s_mov_b32 s63, 0x20000
    s_mov_b32 s78, 32
    s_lshl_b32 s76, s5, 13
    s_add_u32 s77, s76, 64
    s_lshl_b32 s7, s5, 7
    s_cmp_ge_u32 s4, 352
    s_cbranch_scc1 pp_wd
    s_cmp_ge_u32 s4, 320
    s_cbranch_scc1 pp_wo
    s_cmp_ge_u32 s4, 224
    s_cbranch_scc1 pp_qkv
    """)
    k(f"""
    s_cmp_eq_u32 s5, 0
    s_cselect_b32 s60, s24, s26
    s_cselect_b32 s61, s25, s27
    s_mov_b32 s62, {512*1792*2}
    s_lshr_b32 s8, s4, 3
    s_and_b32 s9, s4, 7
    s_mov_b32 s79, 3584
    s_mul_i32 s68, s9, {64*3584}
    s_lshl_b32 s10, s8, 7
    s_add_u32 s68, s68, s10
    s_mov_b32 s78, 8192
    s_lshl_b32 s76, s6, 5
    s_add_u32 s77, s76, 32
    """)
    for qq in range(2):
        k(f"""
        s_lshl_b32 s10, s8, 2
        s_add_u32 s10, s10, s6
        s_add_u32 s10, s10, {qq}
        s_mul_i32 s11, s10, 9363
        s_lshr_b32 s11, s11, 16
        s_mul_i32 s12, s11, 7
        s_sub_u32 s12, s10, s12
        s_sub_u32 s13, s9, s11
        s_and_b32 s13, s13, 7
        s_mul_i32 s14, s13, {4*NFIRST}
        s_add_u32 s14, s14, s12
        s_lshl_b32 s15, s12, 5
        s_lshl_b32 s13, s13, 2
        s_add_u32 s15, s15, s13
        s_cmp_lt_u32 s12, {NFIRST}
        s_cselect_b32 s14, s14, s15
        s_cselect_b32 s{72+qq}, {NFIRST}, 1
        s_lshl_b32 s{72+qq}, s{72+qq}, 10
        s_lshl_b32 s14, s14, 10
        s_mul_i32 s11, s11, {224*1024}
        s_add_u32 s14, s14, s11
        s_add_u32 s{70+qq}, s14, {P_GU}
        s_mul_i32 s14, s9, {3584*4}
        s_lshl_b32 s10, s10, 7
        s_add_u32 s14, s14, s10
        s_add_u32 s{74+qq}, s14, {CS_GU}
        """)
    k("s_branch pp_done")
    k.label("pp_qkv")
    k(f"""
    s_mov_b32 s60, s18
    s_mov_b32 s61, s19
    s_mov_b32 s62, {512*1536*2}
    s_sub_u32 s4, s4, 224
    s_lshr_b32 s8, s4, 3
    s_and_b32 s9, s4, 7
    s_mov_b32 s79, 3072
    s_mul_i32 s68, s9, {64*3072}
    s_lshl_b32 s10, s8, 8
    s_add_u32 s68, s68, s10
    s_add_u32 s68, s68, s7
    s_lshr_b32 s11, s8, 2
    s_and_b32 s8, s8, 3
    s_sub_u32 s12, s11, 1
    s_lshl_b32 s13, s12, 7
    s_cmp_eq_u32 s11, 0
    s_cselect_b32 s11, 1, 2
    s_cselect_b32 s13, 256, s13
    s_cselect_b32 s12, 64, s12
    s_mul_i32 s14, s9, 6144
    s_add_u32 s13, s13, s14
    """)
    for qq in range(2):
        k(f"""
        s_lshl_b32 s10, s8, 2
        s_add_u32 s10, s10, s6
        s_add_u32 s10, s10, {qq}
        s_sub_u32 s14, s9, s10
        s_and_b32 s14, s14, 7
        s_lshl_b32 s14, s14, 2
        s_mul_i32 s14, s14, s11
        s_add_u32 s14, s14, s12
        s_lshl_b32 s14, s14, 10
        s_mul_i32 s15, s10, {96*1024}
        s_add_u32 s14, s14, s15
        s_add_u32 s{70+qq}, s14, {P_QKV}
        s_lshl_b32 s{72+qq}, s11, 10
        s_mul_i32 s15, s10, 384
        s_add_u32 s15, s15, s13
        s_add_u32 s{74+qq}, s15, {CS_QKV}
        """)
    k("s_branch pp_done")
    k.label("pp_wo")
    k(f"""
    s_mov_b32 s60, s20
    s_mov_b32 s61, s21
    s_mov_b32 s62, {512*512*2}
    s_sub_u32 s4, s4, 320
    s_lshr_b32 s8, s4, 3
    s_and_b32 s9, s4, 7
    s_mov_b32 s79, 1024
    s_lshl_b32 s68, s9, 16
    s_lshl_b32 s10, s8, 8
    s_add_u32 s68, s68, s10
    s_add_u32 s68, s68, s7
    s_lshl_b32 s10, s8, 17
    s_lshl_b32 s11, s9, 14
    s_add_u32 s10, s10, s11
    s_lshl_b32 s11, s6, 10
    s_add_u32 s10, s10, s11
    s_add_u32 s70, s10, {P_WO}
    s_add_u32 s71, s70, 1024
    s_mov_b32 s72, 4096
    s_mov_b32 s73, 4096
    s_mov_b32 s74, {CS_DUMMY}
    s_mov_b32 s75, {CS_DUMMY}
    s_branch pp_done
    """)
    k.label("pp_wd")
    k(f"""
    s_mov_b32 s60, s28
    s_mov_b32 s61, s29
    s_mov_b32 s62, {1792*512*2}
    s_sub_u32 s4, s4, 352
    s_and_b32 s8, s4, 3
    s_lshr_b32 s9, s4, 2
    s_mov_b32 s79, 1024
    s_lshl_b32 s68, s9, 16
    s_lshl_b32 s10, s8, 8
    s_add_u32 s68, s68, s10
    s_add_u32 s68, s68, s7
    s_mul_i32 s10, s9, 9363
    s_lshr_b32 s10, s10, 16
    s_mul_i32 s10, s10, 7
    s_sub_u32 s11, s9, s10
    s_lshl_b32 s12, s8, 1
    s_add_u32 s12, s12, s5
    s_cmp_eq_u32 s12, 7
    s_cselect_b32 s13, 0, s12
    s_sub_i32 s13, s11, s13
    s_add_i32 s14, s13, 7
    s_cmp_lt_i32 s13, 0
    s_cselect_b32 s13, s14, s13
    s_add_u32 s13, s13, s10
    s_lshl_b32 s13, s13, 13
    s_mul_i32 s12, s12, {224*1024}
    s_add_u32 s13, s13, s12
    s_add_u32 s70, s13, {P_WD}
    s_cmp_ge_u32 s4, 112
    s_cselect_b32 s70, 0x20000000, s70
    s_add_u32 s71, s70, 1024
    s_mov_b32 s72, 2048
    s_mov_b32 s73, 2048
    s_mov_b32 s74, {CS_DUMMY}
    s_mov_b32 s75, {CS_DUMMY}
    """)
    k.label("pp_done")


PT_EVERY = int(os.environ.get('PT_EVERY', '2'))


PACKMODE = int(os.environ.get('PACKMODE', '0'))
def gen_kf():
    assert ROT
    k = Kern("kf_kernel")
    prologue(k, 256, "kf_done")

    def early():
        k(f"""
        s_getpc_b64 s[12:13]
        kf_pc:
        s_sub_u32 s12, s12, kf_pc-kf_kernel
        s_subb_u32 s13, s13, 0
        s_mov_b32 s14, mega_end-kf_kernel
        s_mov_b32 s15, 0x20000
        s_lshr_b32 s4, s2, 3
        s_lshl_b32 s4, s4, 12
        s_lshl_b32 s5, s3, 10
        s_add_u32 s4, s4, s5
        buffer_load_dwordx4 v[240:243], v1, s[12:15], s4 offen
        """)

    common_setup(k, early)
    stamp(k, 6)
    srd(k, 40, 16, 2048 * 512 * 2)
    srd(k, 56, 18, 512 * 1536 * 2)
    srd(k, 64, 32, 256)
    SX, SW, SP, SD = "s[40:43]", "s[56:59]", "s[60:63]", "s[64:67]"
    L_X = 96 * 1024
    AK, AV, AQ = 64, 80, 96
    MF, RR = 40, 48
    VMEAN, VRSTD = 6, 7
    WR = 160
    XS = [192, 208]
    XDV = 224
    XRV = 228
    WDV = 232
    WRV = [233, 234]
    CSA = [208, 212, 216]
    SUMA = 220
    SQA = 144
    SEL = 236
    SUM, SSQ = 16, 17
    VONE = 235
    CSF = [20, 24, 28]
    k(f"""
    s_lshl_b32 s8, s44, 2
    s_add_u32 s8, s8, s3
    s_lshl_b32 s46, s8, 15
    s_and_b32 s47, s45, 7
    s_mul_i32 s48, s3, 12288
    s_add_u32 s48, s48, {L_X}
    v_lshrrev_b32 v8, 3, v0
    v_and_b32 v9, 7, v0
    v_lshrrev_b32 v10, 4, v0
    """)
    for i in range(4):
        k(f"""
        v_add_u32 v11, {4*i}, v10
        v_and_b32 v11, 7, v11
        v_xor_b32 v11, v11, v9
        v_lshlrev_b32 v11, 4, v11
        v_lshl_add_u32 v{XDV+i}, v8, 10, v11
        v_add_u32 v{XDV+i}, {i*8192 - i*1024}, v{XDV+i}
        """)
    xdma = {}

    def x_dma(g):
        k(f"""
        s_add_u32 s4, s47, {g}
        s_and_b32 s4, s4, 7
        s_lshl_b32 s4, s4, 7
        s_add_u32 s4, s4, s46
        s_add_u32 m0, s48, {(g % 3)*4096}
        """)
        for i in range(4):
            xdma[g] = k(f"buffer_load_dwordx4 v{XDV+i}, {SX}, s4 offen offset:{i*1024} lds")

    x_dma(0)
    nb = 1 << MAPB
    k(f"""
    s_lshr_b32 s4, s2, 3
    s_lshl_b32 s4, s4, 2
    s_add_u32 s4, s4, s3
    s_and_b32 s5, s2, 7
    s_and_b32 s5, s5, {nb-1}
    s_mul_i32 s5, s5, {1024//nb}
    s_mul_i32 s7, s4, {4*3072}
    s_add_u32 s5, s5, s7
    v_and_b32 v12, {8//nb-1}, v0
    v_lshlrev_b32 v12, 7, v12
    v_lshrrev_b32 v13, {3-MAPB}, v0
    v_lshl_add_u32 v12, v13, 10, v12
    """)
    nl = 12 * (8 // nb)
    for h in range((nl + 63) // 64):
        n = min(64, nl - 64 * h)
        if n < 64:
            k(f"s_mov_b32 exec_lo, {hex((1 << min(n,32)) - 1)}")
            k(f"s_mov_b32 exec_hi, {hex((1 << max(n-32,0)) - 1)}")
        k(f"buffer_load_dword v247, v12, {SW}, s5 offen")
        if h == 0 and nl > 64:
            k(f"s_add_u32 s5, s5, {(64 // (8//nb)) * 1024}")
    k("s_mov_b64 exec, -1")
    k(f"""
    v_lshrrev_b32 v8, 2, v0
    v_mul_u32_u24 v8, 3072, v8
    v_and_b32 v9, 3, v0
    v_lshl_add_u32 v{WDV}, v9, 4, v8
    s_lshl_b32 s49, s45, 6
    """)
    wtok = {}

    def w_pieces(st):
        L = []

        def setup():
            if st < 4:
                k(f"""
                s_lshr_b32 s51, s3, 1
                s_add_u32 s51, s51, s47
                s_add_u32 s51, s51, {2*st}
                s_and_b32 s51, s51, 7
                s_lshl_b32 s51, s51, 2
                s_and_b32 s4, s3, 1
                s_lshl_b32 s4, s4, 1
                s_add_u32 s51, s51, s4
                s_mul_i32 s51, s51, 49152
                s_add_u32 s51, s51, s49
                s_add_u32 s51, s51, 1024
                """)
            else:
                k(f"""
                s_add_u32 s51, s3, s47
                s_add_u32 s51, s51, {4*(st-4)}
                s_and_b32 s51, s51, 7
                s_mul_i32 s51, s51, {4*49152}
                s_add_u32 s51, s51, s49
                """)

        def one(i):
            if i == 0:
                setup()
            elif st < 4:
                k(f"s_add_u32 s51, s51, {1024 if i % 2 == 1 else 49152 - 1024}")
            else:
                k("s_add_u32 s51, s51, 49152")
            k(f"s_add_u32 m0, s50, {st*16384 + i*1024}")
            t = k(f"buffer_load_dwordx4 v{WDV}, {SW}, s51 offen lds")
            if i == 3:
                wtok[st] = t

        return [lambda i=i: one(i) for i in range(4)]

    pack_params(k)
    k("v_mul_lo_u32 v246, v0, s79")
    k(f"""
    v_mov_b32 v8, 0
    v_mov_b32 v9, 0
    v_mov_b32 v10, 0
    v_mov_b32 v11, 0
    s_mul_i32 s4, s45, 2176
    s_add_u32 s4, s4, {KVB[0]}
    s_or_b32 s5, s44, s3
    s_cmp_eq_u32 s5, 0
    s_cselect_b32 s4, s4, 0x20000000
    s_lshl_b32 s54, s45, 2
    s_cmp_eq_u32 s5, 0
    s_cselect_b32 s55, s54, 0x1000
    buffer_store_dwordx4 v[8:11], v1, {SRD_WS}, s4 offen sc1
    buffer_store_dwordx4 v[8:11], v1, {SRD_WS}, s4 offen offset:1024 sc1
    s_mov_b64 exec, 0xff
    """)
    tz = k(f"buffer_store_dwordx4 v[8:11], v1, {SRD_WS}, s4 offen offset:2048 sc1")
    k(f"""
    s_lshl_b32 s4, s2, 7
    s_add_u32 s4, s4, {CNT}
    buffer_store_dwordx4 v[8:11], v1, {SRD_WS}, s4 offen
    s_mov_b64 exec, 0x1ffff
    s_mul_i32 s4, s2, 136
    s_add_u32 s4, s4, {KVB[1]}
    v_lshlrev_b32 v12, 3, v0
    buffer_store_dwordx2 v[8:9], v12, {SRD_WS}, s4 offen
    s_mov_b64 exec, -1
    """)
    k(f"""
    v_bfe_u32 v8, v2, 1, 3
    v_lshlrev_b32 v9, 7, v2
    v_add_u32 v9, s48, v9
    """)
    for u in range(4):
        k(f"""
        v_add_u32 v10, {2*u}, v3
        v_xor_b32 v10, v10, v8
        v_lshl_add_u32 v{XRV+u}, v10, 4, v9
        """)
    k(f"""
    v_bfe_u32 v8, v0, 4, 1
    v_lshlrev_b32 v8, 5, v8
    v_lshlrev_b32 v9, 3, v3
    v_bfe_u32 v10, v0, 2, 2
    v_add_u32 v9, v9, v10
    v_lshl_add_u32 v8, v9, 6, v8
    v_and_b32 v10, 3, v0
    v_lshl_add_u32 v{WRV[0]}, v10, 3, v8
    v_add_u32 v{WRV[1]}, 0x10000, v{WRV[0]}
    v_mov_b32 v{VONE}, {hex(ONES)}
    v_bfe_u32 v8, v0, 2, 1
    v_bfe_u32 v9, v0, 4, 1
    v_cmp_eq_u32 vcc, v8, v9
    v_cndmask_b32 v{SEL}, 0, v{VONE}, vcc
    v_mov_b32 v{SEL+1}, v{SEL}
    v_mov_b32 v{SEL+2}, v{SEL}
    v_mov_b32 v{SEL+3}, v{SEL}
    """)
    stamp(k, 5)
    for f in w_pieces(0):
        f()
    x_dma(1)
    sc = Sched(k, budget=9)
    sc.period = 1.0
    xrd = {}

    def x_fetch(g):
        while g not in xdma:
            sc.popmem()
        k.wait_vm(xdma[g])
        if g == 0:
            for u in range(4):
                k(f"ds_read_b128 v[{XS[0]+4*u}:{XS[0]+4*u+3}], v{XRV+u} offset:0")
        for u in range(4):
            s = 4 * g + u
            xrd[g] = k(f"ds_read_b128 a[{4*s}:{4*s+3}], v{XRV+u} offset:{(g%3)*4096}")

    items = []
    for s in range(32):
        items += [("w", 2 * s, (AK, s, 0)), ("w", 2 * s + 1, (AV, s, 1))]
    items += [("c", 0, AK), ("c", 1, AV)]
    items += [("w", 64 + s, (AQ, s, 2)) for s in range(32)] + [("c", 2, AQ)]
    N = len(items)
    D, NW = 4, 8
    tok = {}
    ptok = []

    def pack_touch(p):
        m = 0xff << (8 * p)
        k(f"s_mov_b32 exec_lo, {hex(m & 0xffffffff)}")
        k(f"s_mov_b32 exec_hi, {hex(m >> 32)}")
        k(f"buffer_load_dword v247, v246, {SP}, s68 offen")
        k("s_mov_b64 exec, -1")

    PKR = 16
    PR = [248, 252]

    def pack_work():
        PA = [244, 245]
        L = [f"v_bfe_u32 v{PA[0]}, v0, 4, 1", f"v_mul_lo_u32 v{PA[0]}, v{PA[0]}, s78", f"v_lshlrev_b32 v{PA[1]}, 2, v3",
             f"v_bfe_u32 v246, v0, 2, 2", f"v_add_u32 v{PA[1]}, v{PA[1]}, v246", f"v_lshl_add_u32 v{PA[0]}, v{PA[1]}, 7, v{PA[0]}",
             "v_and_b32 v246, 3, v0", f"v_lshl_add_u32 v{PA[0]}, v246, 3, v{PA[0]}", "s_lshr_b32 s81, s3, 1", "s_lshl_b32 s81, s81, 14",
             f"v_add_u32 v{PA[0]}, s81, v{PA[0]}", f"v_add_u32 v{PA[1]}, s77, v{PA[0]}", f"v_add_u32 v{PA[0]}, s76, v{PA[0]}",
             "v_lshlrev_b32 v246, 2, v2"]
        pt = {}
        for qq in range(2):
            for u in range(4):
                r = 128 + (qq * 4 + u) * 4

                def rdp(qq=qq, u=u, r=r):
                    k(f"ds_read_b64_tr_b16 a[{r}:{r+1}], v{PA[qq]} offset:{(16*u)*128}")
                    pt[(qq, u)] = k(f"ds_read_b64_tr_b16 a[{r+2}:{r+3}], v{PA[qq]} offset:{(16*u+8)*128}")

                L.append(rdp)
        for qq in range(2):
            for u in range(4):
                r = 128 + (qq * 4 + u) * 4

                def stp(qq=qq, u=u, r=r):
                    k.wait_lg(pt[(qq, u)])
                    k(f"buffer_store_dwordx4 a[{r}:{r+3}], v1, {SRD_WS}, s{70+qq} offen")
                    if u < 3:
                        k(f"s_add_u32 s{70+qq}, s{70+qq}, s{72+qq}")
                    c = PR[qq]
                    k(f"v_mfma_f32_16x16x32_bf16 v[{c}:{c+3}], v[{SEL}:{SEL+3}], a[{r}:{r+3}], " + ("0" if u == 0 else f"v[{c}:{c+3}]"))

                L.append(stp)
        return L

    def xa_store():
        L = ["s_lshl_b32 s81, s47, 12", "s_add_u32 s81, s81, s46", f"s_add_u32 s81, s81, {XA[0]}"]
        for u in range(4):
            r = XS[0] + 4 * u
            L += [f"v_permlane32_swap_b32 v{r}, v{r+2}", f"v_permlane32_swap_b32 v{r+1}, v{r+3}",
                  f"buffer_store_dwordx4 v[{r}:{r+3}], v1, {SRD_WS}, s81 offen offset:{u*1024}"]
        return L

    def pack_dma():
        L = []

        def setup():
            k(f"""
            v_lshrrev_b32 v244, 3, v0
            v_mul_lo_u32 v244, v244, s79
            v_and_b32 v245, 7, v0
            v_lshl_add_u32 v244, v245, 4, v244
            s_lshl_b32 s69, s79, 3
            s_lshl_b32 s80, s3, 13
            """)

        def one(g):
            k(f"s_add_u32 m0, s80, {g*1024}")
            ptok.append(k(f"buffer_load_dwordx4 v244, {SP}, s68 offen lds"))
            k("s_add_u32 s68, s68, s69")

        return [setup] + [lambda g=g: one(g) for g in range(8)]

    def stage_sync(st):
        while st not in wtok:
            sc.popmem()
        k.wait_vm(wtok[st])
        if st == 4 and PACKMODE == 1:
            while len(ptok) < 8:
                sc.popmem()
            k.wait_vm(ptok[-1])
        k("s_barrier")
        if st in (0, 4):
            stamp(k, {0: 2, 4: 3}[st])
        if st == 3 and PACKMODE == 1:
            sc.addm(pack_dma(), 0)
        if st + 2 < 6:
            sc.addm(w_pieces(st + 2), 0)
        if st == 3 and PACKMODE == 0:
            sc.addm(pack_dma(), 0)
        if st == 4 and PACKMODE == 1:
            sc.addm(pack_work())
        if st == (1 if PACKMODE == 1 else 4):
            sc.addm(xa_store())
        if st == 2:
            k.wait_vm(tz)
            k(f"""
            v_mov_b32 v8, 1
            v_mov_b32 v9, 0
            s_mov_b64 exec, 1
            buffer_store_dword v8, v9, {SD}, s55 offen sc1
            s_mov_b64 exec, -1
            """)

    def rd(n):
        if n >= N or items[n][0] != "w":
            return
        idx = items[n][1]
        if idx % 16 == 0:
            stage_sync(idx // 16)
        off = idx * 1024
        wr = WR + (n % NW) * 4
        va = WRV[off >> 16]
        k(f"ds_read_b64_tr_b16 v[{wr}:{wr+1}], v{va} offset:{off & 0xffff}")
        tok[n] = k(f"ds_read_b64_tr_b16 v[{wr+2}:{wr+3}], v{va} offset:{(off & 0xffff) + 256}")

    def cs_frag(t):
        c, f = CSA[t], CSF[t]
        sd = Kern("tmp")
        sd(f"""
        v_cvt_pk_bf16_f32 v{f+1}, v{c}, 0
        v_mov_b32 v{f+3}, 0
        v_lshlrev_b32 v{f+2}, 16, v{f+1}
        v_sub_f32 v{f+2}, v{c}, v{f+2}
        v_cvt_pk_bf16_f32 v{f}, v{c}, v{f+2}
        v_mov_b32 v{f+2}, 0
        """)
        return [x.text for x in sd.items]

    side = Kern("tmp")
    side(f"""
    v_and_b32 v8, 3, v2
    v_lshrrev_b32 v9, 3, v2
    v_lshl_add_u32 v8, v9, 2, v8
    v_bfe_u32 v9, v2, 2, 1
    v_xor_b32 v9, v9, v3
    v_lshl_add_u32 v8, v9, 4, v8
    v_mov_b32 v{SSQ}, 0
    """)
    for r in range(16):
        side(f"v_cmp_eq_u32 s[{4+2*(r%4)}:{5+2*(r%4)}], {r}, v8")
        if r >= 2:
            side(f"v_cndmask_b32 v{SSQ}, v{SSQ}, v{SQA+r-2}, s[{4+2*((r-2)%4)}:{5+2*((r-2)%4)}]")
    for r in (14, 15):
        side(f"v_cndmask_b32 v{SSQ}, v{SSQ}, v{SQA+r}, s[{4+2*(r%4)}:{5+2*(r%4)}]")
    xhalf_add(side, SSQ, 8, 9)
    side(f"""
    v_mul_f32 v{VMEAN}, {fx(1.0/512)}, v{SUMA}
    v_mul_f32 v{SSQ}, {fx(1.0/512)}, v{SSQ}
    v_fma_f32 v{SSQ}, -v{VMEAN}, v{VMEAN}, v{SSQ}
    v_max_f32 v{SSQ}, 0, v{SSQ}
    v_add_f32 v{SSQ}, {fx(1e-5)}, v{SSQ}
    v_rsq_f32 v{VRSTD}, v{SSQ}
    """)
    mean_frag(side, VMEAN, MF)
    side(f"""
    s_lshl_b32 s13, s3, 8
    s_add_u32 s13, s13, {L_STAT}
    v_lshl_add_u32 v8, v2, 2, s13
    v_lshl_add_u32 v9, v3, 4, s13
    ds_write_b32 v8, v{VRSTD}
    """)
    for q in range(4):
        side(f"ds_read_b128 v[{RR+4*q}:{RR+4*q+3}], v9 offset:{q*32}")
    side(f"v_mul_f32 v13, {fx(LOG2E)}, v{VRSTD}")
    sidetok = []

    sc.add(lambda: x_dma(2), 0)
    sc.addm(w_pieces(1), 0)
    x_fetch(0)
    for n in range(D):
        rd(n)
    for j in range(N):
        it = items[j]
        if it[0] == "w":
            acc, s, t = it[2]
            k.wait_lg(tok[j])
            if acc == AK and s % 4 == 0:
                k.wait_lg(xrd[s // 4])
                if s // 4 + 3 < 8:
                    x_dma(s // 4 + 3)
            wr = WR + (j % NW) * 4
            w = f"v[{wr}:{wr+3}]"
            x = f"a[{4*s}:{4*s+3}]"
            cin = "0" if s == 0 else f"v[{acc}:{acc+15}]"
        else:
            t, acc = it[1], it[2]
            if t == 0:
                sc.flush((1,))
                for x_ in side.items:
                    k(x_.text)
                sidetok.append(k.lg_n)
                for x_ in cs_frag(0) + cs_frag(1):
                    k(x_)
            if t == 2:
                pend = sc.q[1]
                sc.q[1] = []
                for x_ in cs_frag(2):
                    k(x_)
                sc.q[1] = pend
            w = f"v[{CSF[t]}:{CSF[t]+3}]"
            x = f"v[{MF}:{MF+3}]"
            cin = f"v[{acc}:{acc+15}]"
        if acc == AQ:
            k(f"v_mfma_f32_32x32x16_bf16 v[{acc}:{acc+15}], {w}, {x}, {cin}")
        else:
            k(f"v_mfma_f32_32x32x16_bf16 v[{acc}:{acc+15}], {x}, {w}, {cin}")
        sc.mfma_issued()
        rd(j + D)
        if it[0] == "w":
            c = CSA[t]
            k(f"v_mfma_f32_16x16x32_bf16 v[{c}:{c+3}], v[{SEL}:{SEL+3}], {w}, " + ("0" if s == 0 else f"v[{c}:{c+3}]"))
            if acc == AK:
                k(f"v_mfma_f32_32x32x16_bf16 v[{SQA}:{SQA+15}], {x}, {x}, " + ("0" if s == 0 else f"v[{SQA}:{SQA+15}]"))
            if acc == AV:
                k(f"v_mfma_f32_16x16x32_bf16 v[{SUMA}:{SUMA+3}], v[{SEL}:{SEL+3}], {x}, " + ("0" if s == 0 else f"v[{SUMA}:{SUMA+3}]"))
        if it[0] == "w" and acc == AK and s % 4 == 2 and s // 4 + 1 < 8:
            x_fetch(s // 4 + 1)
        if PACKMODE == 1 and it[0] == "w" and acc == AV and s % PT_EVERY == 0 and s // PT_EVERY < 8:
            pack_touch(s // PT_EVERY)
        if j == 68:
            sc.add(lambda: k.wait_lg(sidetok[0]))
            sc.addm(kv_epi_list())
        sc.run()
    sc.flush()

    def cs_store():
        for qq in range(2):
            k(f"buffer_store_dword v{PR[qq]}, v246, {SRD_WS}, s{74+qq} offen")

    if PACKMODE == 1:
        cs_store()

    def before_barrier():
        k.wait_vm(ptok[-1])
        _lab[0] += 1
        L = f"kfz{_lab[0]}"
        raw(k, f"""
        s_cmp_lg_u32 s3, 0
        s_cbranch_scc1 {L}_done
        v_mov_b32 v33, 0
        s_mov_b64 exec, 1
        s_mov_b32 s5, 0
        {L}_loop:
        buffer_load_dword v32, v33, {SD}, s54 offen sc1
        s_add_u32 s5, s5, 1
        s_waitcnt vmcnt(0)
        v_cmp_eq_u32 vcc, 0, v32
        s_cmp_gt_u32 s5, 0x40000
        s_cbranch_scc1 {L}_out
        s_nop 1
        s_cbranch_vccnz {L}_loop
        {L}_out:
        s_mov_b64 exec, -1
        {L}_done:
        """)

    p1_tail(k, 0, before_barrier)
    if PACKMODE == 0:
        sc.addm(pack_work())
        sc.flush()
        cs_store()
    if STAMP:
        stamp(k, 7)
        k.wait_vm0()
        stamp(k, 8)
        stamp(k, 9, True)
        stamp_flush(k, 0)
    k.label("kf_done")
    k("s_endpgm")
    return k, (256, 256, LDS_TOTAL)


HEADER = """; Kernarg layout for this problem (80 bytes, ptrs only, base s[0:1]):
"""


def build(out=None):
    ks = [gen_kf(), gen_mega()]
    s = HEADER
    for kk, (g, b, l) in ks:
        s += f"; @launch kernel={kk.name} grid=({g},1,1) block=({b},1,1) lds={l}\n"
    s += '.amdgcn_target "amdgcn-amd-amdhsa--gfx950"\n.text\n'
    descs = ""
    for kk, _ in ks:
        t, d = kk.full_text()
        s += t
        descs += d
        print(f"{kk.name}: {sum(1 for i in kk.items if not isinstance(i,str))} instrs, pads {kk.npad}, v{kk.maxv+1} a{kk.maxa+1} s{kk.maxs+1}", file=sys.stderr)
    s += '.section .rodata,"a"\n' + descs
    out = out or f"cdna_kernels/{NAME}.s"
    open(out, "w").write(s)


if __name__ == "__main__":
    if len(sys.argv) > 1 and sys.argv[1] == "stamp":
        STAMP = True
        build(out=sys.argv[2] if len(sys.argv) > 2 else "stamp.s")
    else:
        build(out=sys.argv[1] if len(sys.argv) > 1 else None)
```
